```python
import torch

def _softmax(x, axis=-1):
    return torch.softmax(x, dim=axis)
def _gelu(x):
    return torch.nn.functional.gelu(x, approximate="tanh")
def _silu(x):
    return torch.nn.functional.silu(x)
def _sigmoid(x):
    return torch.sigmoid(x)
def _layernorm(x, axis=-1, eps=1e-5):
    m = x.mean(dim=axis, keepdim=True)
    v = x.var(dim=axis, keepdim=True, unbiased=False)
    return (x - m) / torch.sqrt(v + eps)
def _scatter_add(tgt, idx, src, axis=0):
    return tgt.clone().index_add_(axis, idx, src)
def _segment_sum(src, seg, n):
    out = torch.zeros((n,) + src.shape[1:], dtype=src.dtype)
    return out.index_add_(0, seg, src)
def _pad(x, pw):
    flat = tuple(v for pair in reversed(pw) for v in pair)
    return torch.nn.functional.pad(x, flat)

kernel_name = 'gated_mix__softmax_full_mha__mixer_token_mlp__prompt'

def setup_inputs():

    _w = (lambda a: (lambda t: t.to(torch.bfloat16) if t.is_floating_point() else t)(torch.as_tensor(a)))
    def _A_setup():
        B, S, D = 1, 2048, 512
        return {
            "x": _w((lambda *s: torch.randn(*s, dtype=torch.bfloat16) * 0.05)(B, S, D)),
            "wqkv": _w((lambda *s: torch.randn(*s, dtype=torch.bfloat16) * 0.8)(D, 3 * D)),
            "wo": _w((lambda *s: torch.randn(*s, dtype=torch.bfloat16) * 0.05)(D, D)),
        }
    _A_in = _A_setup()

    def _B_setup():
        B, S, D, F = 1, 2048, 512, 1792
        return {
            "x": _w((lambda *s: torch.randn(*s, dtype=torch.bfloat16) * 0.05)(B, S, D)),
            "w1": _w((lambda *s: torch.randn(*s, dtype=torch.bfloat16) * 0.8)(S, F) * (S ** -0.5)),
            "b1": _w((lambda *s: torch.randn(*s, dtype=torch.bfloat16) * 12.8)(F) * 0.02),
            "w2": _w((lambda *s: torch.randn(*s, dtype=torch.bfloat16) * 0.05)(F, S) * (F ** -0.5)),
            "b2": _w((lambda *s: torch.randn(*s, dtype=torch.bfloat16) * 0.8)(S) * 0.02),
        }
    _B_in = _B_setup()

    return {
        "A_x": _A_in["x"],
        "A_wqkv": _A_in["wqkv"],
        "A_wo": _A_in["wo"],
        "B_x": _B_in["x"],
        "B_w1": _B_in["w1"],
        "B_b1": _B_in["b1"],
        "B_w2": _B_in["w2"],
        "B_b2": _B_in["b2"],
        "gate_w": _w((lambda *s: torch.randn(*s, dtype=torch.bfloat16) * 0.05)(512) * 16.0),
    }

def reference(A_x, A_wqkv, A_wo, B_x, B_w1, B_b1, B_w2, B_b2, gate_w):
    def _A_ref(x, wqkv, wo):
        B, S, D = x.shape
        H = 32; Dh = D // H
        qkv = (lambda x, *d: x.permute(*d))((x @ wqkv).reshape(B, S, 3, H, Dh), 2, 0, 3, 1, 4)
        q, k, v = qkv[0], qkv[1], qkv[2]
        scale = Dh ** -0.5
        scores = torch.einsum("bhqd,bhkd->bhqk", q, k) * scale
        p = _softmax(scores, axis=-1)
        o = torch.einsum("bhqk,bhkd->bhqd", p, v)
        return (lambda x, *d: x.permute(*d))(o, 0, 2, 1, 3).reshape(B, S, D) @ wo

    def _B_ref(x, w1, b1, w2, b2):
        B, S, D = x.shape
        h = _layernorm(x, axis=-1)
        u = torch.einsum("bsd,sf->bdf", h, w1) + b1
        u = _gelu(u)
        y = torch.einsum("bdf,fs->bds", u, w2) + b2
        return (lambda x, *d: x.permute(*d))(y, 0, 2, 1)

    x = A_x
    g = _sigmoid((x * gate_w).sum(-1, keepdims=True))
    a = _A_ref(x, A_wqkv, A_wo)
    b = _B_ref(x, B_w1, B_b1, B_w2, B_b2)
    return g * a + (1 - g) * b
```

```python
import sys, math

NAME = "gated_mix__softmax_full_mha__mixer_token_mlp__prompt"

WS_Q = 0x000000
WS_KV = 0x200000
WS_HT = 0x600000
WS_U = 0x800000
WS_O = 0xA00000
WS_G = 0xC00000
WS_FH = 0xD00000
WS_FQ = 0xD01000
WS_FU = 0xD02000
WS_FO = 0xD03000
WS_EPOCH = 0xD05000
WS_SIZE = 0x1000000

LDS_A = 0
LDS_G = 98304
GRING = 14336
R = 7
D = 6
LDS_SYNC = LDS_G + 4 * GRING
LDS_TOTAL = LDS_SYNC + 64
OOB = 0x40000

S_WG, S_WAVE = 2, 3
SRD_WS, SRD_1, SRD_2, SRD_3, SRD_4 = 4, 8, 12, 40, 44
P_X, P_WQKV, P_WO, P_W1, P_B1, P_W2, P_B2, P_GW, P_OUT, P_DBG, P_WS = 16, 18, 20, 24, 26, 28, 30, 32, 34, 36, 38
S_SPIN, S_TAG = 48, 49
S_VMASK = 50

LOG2E = 1.4426950408889634


def f32(x):
    import struct
    return "0x%08x" % struct.unpack("<I", struct.pack("<f", x))[0]


class Gen:
    def __init__(self, mega):
        self.L = []
        self.mega = mega
        self.nlab = 0
        self.sc = " sc1" if mega else ""

    def __call__(self, s):
        for line in s.split("\n"):
            line = line.strip()
            if line:
                self.L.append("    " + line if not line.endswith(":") else line)

    def lab(self, base="L"):
        self.nlab += 1
        return f"{base}_{self.nlab}"

    def srd(self, s, p, nbytes):
        self(f"s_mov_b32 s{s}, s{p}\ns_mov_b32 s{s+1}, s{p+1}\ns_mov_b32 s{s+2}, {nbytes}\ns_mov_b32 s{s+3}, 0x00020000")

    def signal(self, vsig, vtmp, val):
        self(f"v_mov_b32 v{vtmp}, {val}\nds_write_b32 v{vsig}, v{vtmp}")

    def wait(self, vpoll, vtmp, val, sleep=False):
        l0, l1 = self.lab("W"), self.lab("W")
        self(f"""{l0}:
        ds_read_b32 v{vtmp}, v{vpoll}
        s_waitcnt lgkmcnt(0)
        v_cmp_gt_u32 vcc, {val}, v{vtmp}
        s_cbranch_vccz {l1}
        s_sub_u32 s{S_SPIN}, s{S_SPIN}, 1
        s_cbranch_scc0 {l0}
        s_mov_b32 s{S_SPIN}, 0
        {l1}:""")

    def gwait(self, vaddr, vtmp, x2=False):
        if not self.mega:
            return
        l0, l1 = self.lab("GW"), self.lab("GW")
        if not x2:
            self(f"""{l0}:
            buffer_load_dword v{vtmp}, v{vaddr}, s[{SRD_WS}:{SRD_WS+3}], 0 offen sc1
            s_waitcnt vmcnt(0)
            v_cmp_ne_u32 vcc, s{S_TAG}, v{vtmp}
            s_cbranch_vccz {l1}
            s_sleep 2
            s_sub_u32 s{S_SPIN}, s{S_SPIN}, 1
            s_cbranch_scc0 {l0}
            s_mov_b32 s{S_SPIN}, 0
            {l1}:""")
        else:
            self(f"""{l0}:
            buffer_load_dwordx2 v[{vtmp}:{vtmp+1}], v{vaddr}, s[{SRD_WS}:{SRD_WS+3}], 0 offen sc1
            s_waitcnt vmcnt(0)
            v_cmp_ne_u32 vcc, s{S_TAG}, v{vtmp}
            v_cmp_ne_u32 s[52:53], s{S_TAG}, v{vtmp+1}
            s_or_b64 vcc, vcc, s[52:53]
            s_cbranch_vccz {l1}
            s_sleep 2
            s_sub_u32 s{S_SPIN}, s{S_SPIN}, 1
            s_cbranch_scc0 {l0}
            s_mov_b32 s{S_SPIN}, 0
            {l1}:""")

    def gsignal(self, soff, vtmp, vtmp2):
        if not self.mega:
            return
        self(f"""v_mov_b32 v{vtmp}, s{S_TAG}
        v_cmp_eq_u32 vcc, 0, v0
        v_mov_b32 v{vtmp2}, 0x7ffffff0
        s_nop 0
        v_cndmask_b32 v{vtmp2}, v{vtmp2}, 0, vcc
        s_waitcnt vmcnt(0)
        buffer_store_dword v{vtmp}, v{vtmp2}, s[{SRD_WS}:{SRD_WS+3}], s{soff} offen sc1""")

    def prologue(self, label, wave_off, exit_label):
        self(f""".p2align 8
        .type {label},@function
        {label}:
        s_cmp_ge_u32 s2, 256
        s_cbranch_scc1 {exit_label}
        s_load_dwordx16 s[16:31], s[0:1], 0
        s_load_dwordx8 s[32:39], s[0:1], 64
        v_lshrrev_b32 v1, 6, v0
        v_and_b32 v0, 63, v0
        s_mov_b32 s{S_SPIN}, 0x40000
        v_readfirstlane_b32 s{S_WAVE}, v1
        v_lshlrev_b32 v2, 2, v0
        v_add_u32 v2, {LDS_SYNC}, v2
        v_mov_b32 v3, 0""")
        if wave_off:
            self(f"s_add_u32 s{S_WAVE}, s{S_WAVE}, {wave_off}")
        l = self.lab("P")
        self(f"""s_cmp_lg_u32 s{S_WAVE}, 8
        s_cbranch_scc1 {l}
        ds_write_b32 v2, v3
        {l}:
        s_waitcnt lgkmcnt(0)""")
        self.srd(SRD_WS, P_WS, WS_SIZE)
        if self.mega:
            self(f"""s_add_u32 s52, s{P_WS}, {WS_EPOCH}
            s_addc_u32 s53, s{P_WS+1}, 0
            s_load_dword s{S_TAG}, s[52:53], 0 glc""")

    def barrier0(self):
        self("s_waitcnt lgkmcnt(0)")
        if self.mega:
            self(f"s_add_u32 s{S_TAG}, s{S_TAG}, 0x9E3779B9")
        self("s_barrier")

    def sync_regs(self, vsig, vpoll, first, count):
        self(f"""s_lshl_b32 s52, s{S_WAVE}, 2
        s_add_u32 s52, s52, {LDS_SYNC}
        v_mov_b32 v{vsig}, {OOB}
        v_mov_b32 v{vpoll}, s52
        v_cmp_eq_u32 vcc, 0, v0
        s_nop 1
        v_cndmask_b32 v{vsig}, v{vsig}, v{vpoll}, vcc
        v_and_b32 v{vpoll}, {count-1}, v0
        v_lshlrev_b32 v{vpoll}, 2, v{vpoll}
        v_add_u32 v{vpoll}, {LDS_SYNC + 4*first}, v{vpoll}""")

    def allreduce(self, regs, tmps, op="v_add_f32"):
        for sh in (1, 2, 4, 8):
            for r in regs:
                self(f"{op}_dpp v{r}, v{r}, v{r} row_ror:{sh} row_mask:0xf bank_mask:0xf")
            if len(regs) < 3:
                self("s_nop 1")
        for sw in ("v_permlane16_swap_b32", "v_permlane32_swap_b32"):
            for r, t in zip(regs, tmps):
                self(f"v_mov_b32 v{t}, v{r}")
            self("s_nop 1")
            for r, t in zip(regs, tmps):
                self(f"{sw} v{r}, v{t}")
            self("s_nop 1")
            for r, t in zip(regs, tmps):
                self(f"{op} v{r}, v{r}, v{t}")
            self("s_nop 1")

    VG_SIG, VG_POLL = 14, 15

    def ln_issue(self):
        self.srd(SRD_1, P_X, 2048 * 1024)
        self.srd(SRD_2, P_GW, 1024)
        self(f"""s_sub_u32 s54, s{S_WAVE}, 8
        s_lshl_b32 s55, s{S_WG}, 3
        s_lshl1_add_u32 s55, s54, s55
        s_lshl_b32 s56, s55, 10
        v_lshlrev_b32 v1, 4, v0
        buffer_load_dwordx4 v[152:155], v1, s[{SRD_1}:{SRD_1+3}], s56 offen
        buffer_load_dwordx4 v[156:159], v1, s[{SRD_1}:{SRD_1+3}], s56 offen offset:1024
        buffer_load_dwordx4 v[160:163], v1, s[{SRD_2}:{SRD_2+3}], 0 offen""")

    def ln(self, vm_after):
        X0, X1, GW, T = 88, 96, 104, 112
        self(f"s_waitcnt vmcnt({vm_after})")
        for (src, dst) in ((152, X0), (156, X1), (160, GW)):
            for i in range(4):
                self(f"v_lshlrev_b32 v{dst+2*i}, 16, v{src+i}\nv_and_b32 v{dst+2*i+1}, 0xffff0000, v{src+i}")
        s0, s1, d0, d1 = T, T + 1, T + 2, T + 3
        self(f"v_add_f32 v{s0}, v{X0}, v{X0+1}\nv_add_f32 v{s1}, v{X1}, v{X1+1}")
        self(f"v_mul_f32 v{d0}, v{X0}, v{GW}\nv_mul_f32 v{d1}, v{X1}, v{GW}")
        for i in range(2, 8):
            self(f"v_add_f32 v{s0}, v{s0}, v{X0+i}\nv_add_f32 v{s1}, v{s1}, v{X1+i}")
        for i in range(1, 8):
            self(f"v_fmac_f32 v{d0}, v{X0+i}, v{GW+i}\nv_fmac_f32 v{d1}, v{X1+i}, v{GW+i}")
        self("s_nop 1")
        self.allreduce([s0, s1, d0, d1], [T + 4, T + 5, T + 6, T + 7])
        self(f"v_mul_f32 v{s0}, {f32(1/512)}, v{s0}\nv_mul_f32 v{s1}, {f32(1/512)}, v{s1}")
        for i in range(8):
            self(f"v_sub_f32 v{X0+i}, v{X0+i}, v{s0}\nv_sub_f32 v{X1+i}, v{X1+i}, v{s1}")
        self(f"v_mul_f32 v{s0}, v{X0}, v{X0}\nv_mul_f32 v{s1}, v{X1}, v{X1}")
        for i in range(1, 8):
            self(f"v_fmac_f32 v{s0}, v{X0+i}, v{X0+i}\nv_fmac_f32 v{s1}, v{X1+i}, v{X1+i}")
        self("s_nop 1")
        self.allreduce([s0, s1], [T + 4, T + 5])
        self(f"""v_mov_b32 v{T+4}, {f32(1e-5)}
        v_fmac_f32 v{T+4}, {f32(1/512)}, v{s0}
        v_mov_b32 v{T+5}, {f32(1e-5)}
        v_fmac_f32 v{T+5}, {f32(1/512)}, v{s1}
        v_rsq_f32 v{s0}, v{T+4}
        v_rsq_f32 v{s1}, v{T+5}
        v_cmp_eq_u32 vcc, 0, v0
        v_mul_f32 v{d0}, {f32(-LOG2E)}, v{d0}
        v_mul_f32 v{d1}, {f32(-LOG2E)}, v{d1}
        v_cndmask_b32 v{d0}, v{d1}, v{d0}, vcc
        v_exp_f32 v{d0}, v{d0}""")
        for i in range(8):
            self(f"v_mul_f32 v{X0+i}, v{X0+i}, v{s0}\nv_mul_f32 v{X1+i}, v{X1+i}, v{s1}")
        self(f"v_add_f32 v{d0}, 1.0, v{d0}\nv_rcp_f32 v{d0}, v{d0}")
        for i in range(4):
            self(f"v_cvt_pk_bf16_f32 v{152+i}, v{X0+2*i}, v{X0+2*i+1}\nv_cvt_pk_bf16_f32 v{156+i}, v{X1+2*i}, v{X1+2*i+1}")
        self(f"""s_mul_i32 s56, s54, {GRING}
        s_add_u32 s56, s56, {LDS_G + 6*2048}
        v_lshl_add_u32 v1, v0, 4, s56
        ds_write_b128 v1, v[152:155]
        ds_write_b128 v1, v[156:159] offset:1024
        v_lshlrev_b32 v2, 2, v0
        v_cmp_gt_u32 vcc, 2, v0
        v_mov_b32 v3, 0x7ffffff0
        s_lshl_b32 s56, s55, 2
        v_cndmask_b32 v2, v3, v2, vcc
        s_add_u32 s56, s56, {WS_G}
        buffer_store_dword v{d0}, v2, s[{SRD_WS}:{SRD_WS+3}], s56 offen{self.sc}""")
        self.signal(self.VG_SIG, 3, 1)
        self(f"""v_bfe_u32 v1, v0, 3, 1
        v_mul_u32_u24 v1, {GRING}, v1
        v_bfe_u32 v2, v0, 2, 1
        v_lshl_add_u32 v1, v2, 10, v1
        v_lshrrev_b32 v2, 4, v0
        v_lshl_add_u32 v1, v2, 5, v1
        v_and_b32 v2, 3, v0
        v_lshl_add_u32 v1, v2, 3, v1
        s_lshl_b32 s56, s54, 8
        s_add_u32 s56, s56, {LDS_G + 6*2048}
        v_add_u32 v1, s56, v1""")
        self.wait(self.VG_POLL, 3, 1)
        self(f"""ds_read_b64_tr_b16 v[152:153], v1
        ds_read_b64_tr_b16 v[154:155], v1 offset:{2*GRING}
        ds_read_b64_tr_b16 v[156:157], v1 offset:128
        ds_read_b64_tr_b16 v[158:159], v1 offset:{2*GRING+128}""")
        self.signal(self.VG_SIG, 3, 2)
        self(f"""v_lshrrev_b32 v1, 5, v0
        v_lshlrev_b32 v1, 17, v1
        v_and_b32 v2, 31, v0
        v_lshl_add_u32 v1, v2, 4, v1
        s_lshl_b32 s56, s54, 19
        s_lshr_b32 s57, s{S_WG}, 1
        s_lshl_b32 s57, s57, 10
        s_add_u32 s56, s56, s57
        s_and_b32 s57, s{S_WG}, 1
        s_lshl_b32 s57, s57, 9
        s_add_u32 s56, s56, s57
        s_add_u32 s56, s56, {WS_HT}
        s_add_u32 s57, s56, {2*128*1024}
        s_waitcnt lgkmcnt(0)
        buffer_store_dwordx4 v[152:155], v1, s[{SRD_WS}:{SRD_WS+3}], s56 offen{self.sc}
        buffer_store_dwordx4 v[156:159], v1, s[{SRD_WS}:{SRD_WS+3}], s57 offen{self.sc}""")
        if self.mega:
            self(f"""s_lshl_b32 s56, s54, 10
            s_lshl2_add_u32 s56, s{S_WG}, s56
            s_add_u32 s56, s56, {WS_FH}""")
            self.gsignal(56, 2, 3)

    def qkv_map(self):
        self(f"""s_and_b32 s52, s{S_WG}, 7
        s_lshr_b32 s53, s{S_WG}, 3
        s_lshr_b32 s60, s52, 1
        s_lshl_b32 s60, s60, 3
        s_and_b32 s54, s53, 7
        s_add_u32 s60, s60, s54
        s_and_b32 s61, s52, 1
        s_lshl_b32 s61, s61, 2
        s_lshr_b32 s54, s53, 3
        s_add_u32 s61, s61, s54
        s_lshl1_add_u32 s62, s54, s53
        s_add_u32 s62, s62, s52
        s_and_b32 s62, s62, 7""")

    VA_SIG, VA_POLL, VA_POLL2 = 104, 105, 106

    def qkv_loader_issue(self):
        self(f"""s_lshl_b32 s66, s62, 7
        s_add_u32 s66, s66, s64
        s_add_u32 m0, s63, s67
        s_mul_i32 s68, s62, {64*3072}
        buffer_load_dwordx4 v4, s[{SRD_1}:{SRD_1+3}], s66 offen lds
        s_add_u32 m0, m0, 1024
        s_add_u32 s68, s68, s65
        buffer_load_dwordx4 v5, s[{SRD_1}:{SRD_1+3}], s66 offen lds
        s_add_u32 m0, s63, s69""")
        for p in range(3):
            self(f"""s_add_u32 s70, s68, {p*1024}
            buffer_load_dwordx4 v6, s[{SRD_2}:{SRD_2+3}], s70 offen lds
            s_add_u32 s70, s68, {p*1024 + 8*3072 - 1024}
            buffer_load_dwordx4 v6, s[{SRD_2}:{SRD_2+3}], s70 offen offset:1024 lds""")
            if p < 2:
                self("s_add_u32 m0, m0, 2048")
        self(f"""s_add_u32 s62, s62, 1
        s_and_b32 s62, s62, 7
        s_add_u32 s63, s63, 32768
        s_cmp_eq_u32 s63, 98304
        s_cselect_b32 s63, 0, s63""")

    def qkv_loader(self):
        self.srd(SRD_1, P_X, 2048 * 1024)
        self.srd(SRD_2, P_WQKV, 512 * 3072)
        self.qkv_map()
        self(f"""s_sub_u32 s71, s{S_WAVE}, 4
        v_lshrrev_b32 v1, 3, v0
        v_and_b32 v2, 7, v0
        v_lshrrev_b32 v3, 4, v0
        v_xor_b32 v4, v2, v3
        v_xor_b32 v5, 4, v4
        v_lshlrev_b32 v4, 4, v4
        v_lshl_add_u32 v4, v1, 10, v4
        v_lshlrev_b32 v5, 4, v5
        v_lshl_add_u32 v5, v1, 10, v5
        v_add_u32 v5, 8192, v5
        v_and_b32 v3, 1, v3
        v_lshlrev_b32 v3, 2, v3
        v_xor_b32 v2, v2, v3
        v_mul_u32_u24 v6, 3072, v1
        v_lshl_add_u32 v6, v2, 4, v6
        s_lshl_b32 s64, s60, 16
        s_lshl_b32 s52, s71, 14
        s_add_u32 s64, s64, s52
        s_mul_i32 s65, s71, {16*3072}
        s_lshl_b32 s52, s61, 7
        s_add_u32 s65, s65, s52
        s_lshl_b32 s67, s71, 11
        s_mul_i32 s69, s71, 6144
        s_add_u32 s69, s69, 8192
        s_mov_b32 s63, 0
        s_mov_b32 s72, 3""")
        l = self.lab("QL")
        self(f"{l}:")
        self.qkv_loader_issue()
        self(f"s_sub_u32 s72, s72, 1\ns_cmp_lg_u32 s72, 0\ns_cbranch_scc1 {l}")
        self.sync_regs(self.VA_SIG, self.VA_POLL, 0, 4)
        self.barrier0()
        l = self.lab("QL")
        self(f"s_mov_b32 s72, 1\n{l}:\ns_waitcnt vmcnt(16)")
        self.signal(self.VA_SIG, 1, "s72")
        self.wait(self.VA_POLL, 1, "s72")
        self.qkv_loader_issue()
        self(f"s_add_u32 s72, s72, 1\ns_cmp_lt_u32 s72, 6\ns_cbranch_scc1 {l}")
        for n, v in ((16, 6), (8, 7), (0, 8)):
            self(f"s_waitcnt vmcnt({n})")
            self.signal(self.VA_SIG, 1, v)

    def qkv_compute(self):
        XA, WA = 4, 8
        FR = [12, 28]
        AQ, AK, AV = 44, 60, 76
        self.qkv_map()
        self(f"""s_and_b32 s64, s{S_WAVE}, 1
        s_lshr_b32 s65, s{S_WAVE}, 1
        v_and_b32 v1, 31, v0
        v_lshrrev_b32 v2, 5, v0
        v_bfe_u32 v3, v0, 1, 3
        v_xor_b32 v3, v3, v2
        v_lshlrev_b32 v3, 4, v3
        v_lshl_add_u32 v{XA}, v1, 7, v3
        s_lshl_b32 s52, s64, 12
        v_add_u32 v{XA}, s52, v{XA}
        v_xor_b32 v{XA+1}, 32, v{XA}
        v_xor_b32 v{XA+2}, 64, v{XA}
        v_xor_b32 v{XA+3}, 96, v{XA}
        v_bfe_u32 v1, v0, 2, 2
        v_lshl_add_u32 v3, v2, 3, v1
        v_lshlrev_b32 v{WA}, 7, v3
        v_lshrrev_b32 v1, 1, v1
        v_xor_b32 v1, s65, v1
        v_lshl_add_u32 v{WA}, v1, 6, v{WA}
        v_bfe_u32 v1, v0, 4, 1
        v_lshl_add_u32 v{WA}, v1, 5, v{WA}
        v_and_b32 v1, 3, v0
        v_lshl_add_u32 v{WA}, v1, 3, v{WA}
        v_add_u32 v{WA}, 8192, v{WA}""")
        for i in range(48):
            self(f"v_mov_b32 v{AQ+i}, 0")
        self.sync_regs(self.VA_SIG, self.VA_POLL, 4, 4)
        self.barrier0()

        def reads(j, b):
            f = FR[b]
            self(f"ds_read_b128 v[{f}:{f+3}], v{XA+j}")
            for p in range(3):
                o = (j * 3 + p) * 2048
                self(f"ds_read_b64_tr_b16 v[{f+4+4*p}:{f+5+4*p}], v{WA} offset:{o}")
                self(f"ds_read_b64_tr_b16 v[{f+6+4*p}:{f+7+4*p}], v{WA} offset:{o+512}")

        def mm(b):
            f = FR[b]
            self(f"""v_mfma_f32_32x32x16_bf16 v[{AQ}:{AQ+15}], v[{f+4}:{f+7}], v[{f}:{f+3}], v[{AQ}:{AQ+15}]
            v_mfma_f32_32x32x16_bf16 v[{AK}:{AK+15}], v[{f+8}:{f+11}], v[{f}:{f+3}], v[{AK}:{AK+15}]
            v_mfma_f32_32x32x16_bf16 v[{AV}:{AV+15}], v[{f}:{f+3}], v[{f+12}:{f+15}], v[{AV}:{AV+15}]""")

        self("s_mov_b32 s72, 1\ns_mov_b32 s63, 0")
        self.wait(self.VA_POLL, 1, 1)
        reads(0, 0)
        l, lend = self.lab("QC"), self.lab("QC")
        self(f"{l}:")
        for j in range(3):
            reads(j + 1, (j + 1) & 1)
            if j == 2:
                self.signal(self.VA_SIG, 1, "s72")
                self("s_waitcnt lgkmcnt(8)")
            else:
                self("s_waitcnt lgkmcnt(7)")
            mm(j & 1)
        self(f"""s_add_u32 s53, s63, 32768
        s_cmp_eq_u32 s53, 98304
        s_cselect_b32 s53, 0, s53
        s_sub_u32 s52, s53, s63
        s_mov_b32 s63, s53
        s_add_u32 s72, s72, 1""")
        for r in (XA, XA + 1, XA + 2, XA + 3, WA):
            self(f"v_add_u32 v{r}, s52, v{r}")
        self("s_waitcnt lgkmcnt(0)")
        mm(1)
        self(f"s_cmp_gt_u32 s72, 8\ns_cbranch_scc1 {lend}")
        self.wait(self.VA_POLL, 1, "s72")
        reads(0, 0)
        self(f"s_branch {l}\n{lend}:")
        c = 0.25 * LOG2E
        self(f"""s_lshl1_add_u32 s66, s60, s64
        s_lshl_b32 s67, s61, 2
        s_lshl1_add_u32 s67, s65, s67
        s_lshl_b32 s68, s67, 6
        s_add_u32 s68, s68, s66
        s_lshl_b32 s69, s68, 10
        s_add_u32 s70, s69, 65536
        s_lshl_b32 s68, s68, 11
        s_add_u32 s68, s68, {WS_KV}
        s_add_u32 s71, s68, 131072
        v_lshlrev_b32 v4, 4, v0
        v_and_b32 v1, 0x33, v0
        v_bfe_u32 v2, v0, 2, 1
        v_lshl_or_b32 v1, v2, 3, v1
        v_bfe_u32 v2, v0, 3, 1
        v_lshl_or_b32 v1, v2, 2, v1
        v_lshlrev_b32 v5, 4, v1
        v_and_b32 v1, 15, v0
        v_lshlrev_b32 v6, 4, v1
        v_bfe_u32 v1, v0, 4, 1
        v_lshl_add_u32 v6, v1, 17, v6
        v_lshrrev_b32 v1, 5, v0
        v_lshl_add_u32 v6, v1, 8, v6
        s_mov_b32 s52, {f32(c)}""")
        for i in range(8):
            self(f"v_cvt_pk_bf16_f32 v{12+i}, v{AK+2*i}, v{AK+2*i+1}")
        for i in range(8):
            self(f"v_cvt_pk_bf16_f32 v{20+i}, v{AV+2*i}, v{AV+2*i+1}")
        self(f"""buffer_store_dwordx4 v[12:15], v5, s[{SRD_WS}:{SRD_WS+3}], s68 offen{self.sc}
        buffer_store_dwordx4 v[16:19], v5, s[{SRD_WS}:{SRD_WS+3}], s71 offen{self.sc}
        buffer_store_dwordx4 v[20:23], v6, s[{SRD_WS}:{SRD_WS+3}], s68 offen offset:1024{self.sc}
        buffer_store_dwordx4 v[24:27], v6, s[{SRD_WS}:{SRD_WS+3}], s68 offen offset:1536{self.sc}""")
        for i in range(16):
            self(f"v_mul_f32 v{AQ+i}, s52, v{AQ+i}")
        for i in range(8):
            self(f"v_cvt_pk_bf16_f32 v{28+i}, v{AQ+2*i}, v{AQ+2*i+1}")
        self(f"""buffer_store_dwordx4 v[28:31], v4, s[{SRD_WS}:{SRD_WS+3}], s69 offen{self.sc}
        buffer_store_dwordx4 v[32:35], v4, s[{SRD_WS}:{SRD_WS+3}], s70 offen{self.sc}""")
        if self.mega:
            self(f"""s_lshl_b32 s52, s67, 7
            s_lshl2_add_u32 s52, s66, s52
            s_add_u32 s52, s52, {WS_FQ}""")
            self.gsignal(52, 1, 2)

    def attention(self, first_barrier):
        Q, KB, VB, P2, S, O, NM = 4, [8, 12], [16, 24], 32, [40, 56], 72, 88
        VSIG, VPOLL, VK, VV, VKN, VVN, VD, VIDX, VT, VGT = 104, 105, 107, 108, 109, 110, 111, 112, 113, 114
        NS = 6
        sc = self.sc
        self(f"""s_and_b32 s52, s{S_WG}, 7
        s_lshr_b32 s53, s{S_WG}, 3
        s_and_b32 s60, s53, 3
        s_lshl2_add_u32 s60, s52, s60
        s_lshr_b32 s61, s53, 2
        s_lshl3_add_u32 s66, s61, s{S_WAVE}
        s_lshl_b32 s63, s60, 17
        s_add_u32 s63, s63, {WS_KV}
        s_lshl_b32 s52, s{S_WAVE}, 11
        s_add_u32 s67, s63, s52
        s_mov_b32 s62, s61
        v_lshlrev_b32 v{VD}, 4, v0
        s_lshl_b32 s68, s60, 6
        s_add_u32 s68, s68, s66
        s_lshl_b32 s68, s68, 10""")
        self.sync_regs(VSIG, VPOLL, 0, 8)
        base = 0
        if self.mega:
            base = 8
            self(f"""s_lshr_b32 s52, s60, 1
            s_lshl_b32 s52, s52, 8
            s_add_u32 s52, s52, {WS_FQ}
            v_lshl_add_u32 v1, v0, 2, s52""")
            self.wait(VPOLL, 2, 8)
            self.gwait(1, 2)
        self(f"buffer_load_dwordx4 v[{Q}:{Q+3}], v{VD}, s[{SRD_WS}:{SRD_WS+3}], s68 offen{sc}")

        def dma():
            self(f"""s_lshl_b32 s52, s62, 14
            s_mov_b32 m0, s69
            s_add_u32 s52, s52, s67
            buffer_load_dwordx4 v{VD}, s[{SRD_WS}:{SRD_WS+3}], s52 offen{sc} lds
            buffer_load_dwordx4 v{VD}, s[{SRD_WS}:{SRD_WS+3}], s52 offen offset:1024{sc} lds
            s_add_u32 s62, s62, 1
            s_and_b32 s62, s62, 7
            s_add_u32 s69, s69, 16384""")

        self(f"s_lshl_b32 s69, s{S_WAVE}, 11\ns_mov_b32 s65, {NS}")
        l = self.lab("AP")
        self(f"{l}:")
        dma()
        self(f"s_sub_u32 s65, s65, 1\ns_cmp_lg_u32 s65, 0\ns_cbranch_scc1 {l}")
        self(f"s_lshl_b32 s69, s{S_WAVE}, 11")
        self(f"""v_mov_b32 v{VIDX}, 0xdddddddd
        v_mov_b32 v{VK}, v{VD}
        v_and_b32 v1, 15, v0
        v_lshlrev_b32 v1, 4, v1
        v_lshrrev_b32 v2, 5, v0
        v_lshl_add_u32 v{VV}, v2, 8, v1
        v_add_u32 v{VV}, 1024, v{VV}
        v_add_u32 v{VKN}, 16384, v{VK}
        v_add_u32 v{VVN}, 16384, v{VV}
        s_mov_b32 s{S_VMASK}, 0x0000ffff
        s_mov_b32 s{S_VMASK+1}, 0x0000ffff
        v_and_b32 v1, 31, v0
        v_cmp_eq_u32 vcc, 16, v1
        v_mov_b32 v2, 0x3f803f80
        s_lshl_b32 s70, s66, 7
        v_cndmask_b32 v{VB[0]}, 0, v2, vcc
        s_add_u32 s70, s70, {WS_G}
        v_lshlrev_b32 v{VGT}, 2, v1""")
        for i in range(1, 16):
            self(f"v_mov_b32 v{VB[0]+i}, v{VB[0]}")
        for i in range(16):
            self(f"v_mov_b32 v{O+i}, 0")
        for i in range(8):
            self(f"v_mov_b32 v{P2+i}, 0")
        if first_barrier:
            self.barrier0()
        self(f"s_waitcnt vmcnt({2*NS-2})")
        self.signal(VSIG, 1, base + 1)
        self.wait(VPOLL, 1, base + 1)
        self(f"""ds_read_b128 v[{KB[0]}:{KB[0]+3}], v{VK}
        ds_read_b128 v[{KB[1]}:{KB[1]+3}], v{VK} offset:2048
        s_mov_b64 exec, s[{S_VMASK}:{S_VMASK+1}]
        ds_read_b128 v[{VB[0]}:{VB[0]+3}], v{VV}
        ds_read_b128 v[{VB[0]+4}:{VB[0]+7}], v{VV} offset:512
        s_mov_b64 exec, -1
        s_waitcnt lgkmcnt(3)
        v_mfma_f32_32x32x16_bf16 v[{S[1]}:{S[1]+15}], v[{KB[0]}:{KB[0]+3}], v[{Q}:{Q+3}], 0
        s_mov_b32 s64, {base+2}
        s_mov_b32 s65, 0
        s_mov_b32 s71, 16384
        s_nop 9""")
        self.rowmax(S[1], NM)
        self(f"s_nop 1\nv_mfma_f32_32x32x16_bf16 v[{S[0]}:{S[0]+15}], v[{KB[0]}:{KB[0]+3}], v[{Q}:{Q+3}], v[{NM}:{NM+15}]\ns_nop 9")
        loop, slow, back, norefill = self.lab("AL"), self.lab("AS"), self.lab("AB"), self.lab("AN")
        self(f".p2align 6\n{loop}:")
        for n in range(8):
            cur, nxt = S[n & 1], S[(n + 1) & 1]
            extra = 1 if n in (2, 4) else 0
            self("s_waitcnt lgkmcnt(2)")
            if n == 5:
                self(f"v_cmp_gt_u32 vcc, s64, v{VT}\ns_cbranch_vccnz {slow}\n{back}:")
            self(f"v_mfma_f32_32x32x16_bf16 v[{nxt}:{nxt+15}], v[{KB[(n+1)&1]}:{KB[(n+1)&1]+3}], v[{Q}:{Q+3}], v[{NM}:{NM+15}]")
            if n + 2 < 8:
                self(f"ds_read_b128 v[{KB[n&1]}:{KB[n&1]+3}], v{VK} offset:{(n+2)*2048}")
            else:
                self(f"ds_read_b128 v[{KB[n&1]}:{KB[n&1]+3}], v{VKN} offset:{(n+2-8)*2048}")
            if n == 2:
                l2, l3 = self.lab("AV"), self.lab("AV")
                self(f"""s_cmp_eq_u32 s65, 0
                s_cbranch_scc1 {l2}
                s_waitcnt vmcnt(0)
                {l2}:
                s_waitcnt vmcnt({2*NS-4})""")
                self.signal(VSIG, VT, "s64")
            if n == 4:
                self(f"ds_read_b32 v{VT}, v{VPOLL}")
            for i in range(0, 4):
                self(f"v_exp_f32 v{cur+i}, v{cur+i}")
            vb = VB[(n + 1) & 1]
            self(f"v_smfmac_f32_32x32x32_bf16 v[{O}:{O+15}], v[{vb+4}:{vb+7}], v[{P2}:{P2+7}], v{VIDX}")
            va, off = (VV, (n + 1) * 2048) if n + 1 < 8 else (VVN, 0)
            self(f"""s_mov_b64 exec, s[{S_VMASK}:{S_VMASK+1}]
            ds_read_b128 v[{vb}:{vb+3}], v{va} offset:{off}
            ds_read_b128 v[{vb+4}:{vb+7}], v{va} offset:{off+512}
            s_mov_b64 exec, -1""")
            for i in range(4, 8):
                self(f"v_exp_f32 v{cur+i}, v{cur+i}")
            for i in range(8, 10):
                self(f"v_exp_f32 v{P2+i-8}, v{cur+i}")
            vb = VB[n & 1]
            self(f"s_waitcnt lgkmcnt({3+extra})")
            self(f"v_smfmac_f32_32x32x32_bf16 v[{O}:{O+15}], v[{vb}:{vb+3}], v[{cur}:{cur+7}], v{VIDX}")
            if n == 5:
                self(f"s_sub_u32 s52, s65, 1\ns_cmp_gt_u32 s52, 1\ns_cbranch_scc1 {norefill}")
                dma()
                self(f"{norefill}:")
            for i in range(10, 16):
                self(f"v_exp_f32 v{P2+i-8}, v{cur+i}")
            if n == 7:
                self(f"""v_mov_b32 v{VK}, v{VKN}
                v_mov_b32 v{VV}, v{VVN}
                s_add_u32 s53, s71, 16384
                s_cmp_eq_u32 s53, {NS*16384}
                s_cselect_b32 s53, 0, s53
                s_sub_u32 s52, s53, s71
                s_mov_b32 s71, s53
                v_add_u32 v{VKN}, s52, v{VKN}
                v_add_u32 v{VVN}, s52, v{VVN}
                s_add_u32 s64, s64, 1
                s_add_u32 s65, s65, 1
                s_cmp_lt_u32 s65, 8
                s_cbranch_scc1 {loop}""")
        if self.mega:
            self(f"""v_and_b32 v1, 3, v0
            v_bfe_u32 v2, v0, 2, 2
            v_lshlrev_b32 v1, 10, v1
            v_lshl_add_u32 v1, v2, 2, v1
            s_lshl_b32 s52, s66, 4
            s_add_u32 s52, s52, {WS_FH}
            v_add_u32 v1, s52, v1""")
        self(f"v_smfmac_f32_32x32x32_bf16 v[{O}:{O+15}], v[{VB[1]+4}:{VB[1]+7}], v[{P2}:{P2+7}], v{VIDX}")
        self.gwait(1, 2)
        self(f"buffer_load_dword v{VGT}, v{VGT}, s[{SRD_WS}:{SRD_WS+3}], s70 offen{sc}")
        fin, fb = self.lab("AF"), self.lab("AR")
        self(f"""s_nop 11
        v_mov_b32 v1, v{O+8}
        v_mov_b32 v2, {f32(2.0**60)}
        s_movk_i32 s52, 0x207
        v_permlane32_swap_b32 v{O+8}, v1
        s_nop 1
        v_cmp_nle_f32 vcc, v{O+8}, v2""")
        for i in range(8):
            self(f"v_cmp_class_f32 s[54:55], v{O+i}, s52\ns_or_b64 vcc, vcc, s[54:55]")
        self(f"s_cbranch_vccnz {fb}\n{fin}:")
        self(f"""v_rcp_f32 v1, v{O+8}
        s_lshl_b32 s52, s66, 5
        s_add_u32 s52, s52, s60
        s_lshl_b32 s53, s52, 10
        s_add_u32 s53, s53, {WS_O}
        s_waitcnt vmcnt(0)
        v_mul_f32 v1, v1, v{VGT}""")
        for i in range(8):
            self(f"v_mul_f32 v{O+i}, v{O+i}, v1")
        for i in range(4):
            self(f"v_cvt_pk_bf16_f32 v{Q+i}, v{O+2*i}, v{O+2*i+1}")
        self(f"buffer_store_dwordx4 v[{Q}:{Q+3}], v{VD}, s[{SRD_WS}:{SRD_WS+3}], s53 offen{sc}")
        if self.mega:
            self(f"s_lshl_b32 s52, s52, 2\ns_add_u32 s52, s52, {WS_FO}")
            self.gsignal(52, 1, 2)
        self("s_endpgm")
        self(f"{slow}:")
        self.wait(VPOLL, VT, "s64")
        self(f"s_branch {back}")
        self(f"{fb}:\ns_waitcnt lgkmcnt(0)\nv_mov_b32 v{VK}, 0xff800000\ns_mov_b32 s65, 0\ns_mov_b32 s52, s63")
        l = self.lab("AR")
        self(f"""{l}:
        buffer_load_dwordx4 v[{KB[0]}:{KB[0]+3}], v{VD}, s[{SRD_WS}:{SRD_WS+3}], s52 offen{sc}
        s_waitcnt vmcnt(0)
        v_mfma_f32_32x32x16_bf16 v[{S[0]}:{S[0]+15}], v[{KB[0]}:{KB[0]+3}], v[{Q}:{Q+3}], 0
        s_nop 15""")
        for i in range(8):
            self(f"v_max3_f32 v{VK}, v{S[0]+2*i}, v{S[0]+2*i+1}, v{VK}")
        self(f"""s_add_u32 s52, s52, 2048
        s_add_u32 s65, s65, 1
        s_cmp_lt_u32 s65, 64
        s_cbranch_scc1 {l}
        v_mov_b32 v1, v{VK}
        s_nop 1
        v_permlane32_swap_b32 v{VK}, v1
        s_nop 1
        v_max_f32 v1, v1, v{VK}""")
        for i in range(16):
            self(f"v_sub_f32 v{NM+i}, 0, v1\nv_mov_b32 v{O+i}, 0")
        self(f"""v_and_b32 v1, 15, v0
        v_lshlrev_b32 v1, 4, v1
        v_lshrrev_b32 v2, 5, v0
        v_lshl_add_u32 v{VV}, v2, 8, v1
        s_mov_b32 s65, 0
        s_mov_b32 s52, s63""")
        l = self.lab("AR")
        self(f"""{l}:
        buffer_load_dwordx4 v[{KB[0]}:{KB[0]+3}], v{VD}, s[{SRD_WS}:{SRD_WS+3}], s52 offen{sc}
        s_mov_b64 exec, s[{S_VMASK}:{S_VMASK+1}]
        buffer_load_dwordx4 v[{VB[0]}:{VB[0]+3}], v{VV}, s[{SRD_WS}:{SRD_WS+3}], s52 offen offset:1024{sc}
        buffer_load_dwordx4 v[{VB[0]+4}:{VB[0]+7}], v{VV}, s[{SRD_WS}:{SRD_WS+3}], s52 offen offset:1536{sc}
        s_mov_b64 exec, -1
        s_waitcnt vmcnt(0)
        v_mfma_f32_32x32x16_bf16 v[{S[0]}:{S[0]+15}], v[{KB[0]}:{KB[0]+3}], v[{Q}:{Q+3}], v[{NM}:{NM+15}]
        s_nop 15""")
        for i in range(16):
            self(f"v_exp_f32 v{S[0]+i}, v{S[0]+i}")
        self(f"""s_nop 1
        v_smfmac_f32_32x32x32_bf16 v[{O}:{O+15}], v[{VB[0]}:{VB[0]+3}], v[{S[0]}:{S[0]+7}], v{VIDX}
        v_smfmac_f32_32x32x32_bf16 v[{O}:{O+15}], v[{VB[0]+4}:{VB[0]+7}], v[{S[0]+8}:{S[0]+15}], v{VIDX}
        s_add_u32 s52, s52, 2048
        s_add_u32 s65, s65, 1
        s_cmp_lt_u32 s65, 64
        s_cbranch_scc1 {l}
        s_nop 15
        v_mov_b32 v1, v{O+8}
        s_nop 1
        v_permlane32_swap_b32 v{O+8}, v1
        s_nop 1
        s_branch {fin}""")

    def rowmax(self, s, nm):
        self(f"v_max3_f32 v1, v{s}, v{s+1}, v{s+2}\nv_max3_f32 v2, v{s+3}, v{s+4}, v{s+5}")
        for i in range(6, 14, 4):
            self(f"v_max3_f32 v1, v{s+i}, v{s+i+1}, v1\nv_max3_f32 v2, v{s+i+2}, v{s+i+3}, v2")
        self(f"""v_max3_f32 v1, v{s+14}, v{s+15}, v1
        v_max_f32 v1, v1, v2
        v_mov_b32 v2, v1
        s_nop 1
        v_permlane32_swap_b32 v1, v2
        s_nop 1
        v_max_f32 v1, v1, v2""")
        for i in range(16):
            self(f"v_sub_f32 v{nm+i}, 0, v1")

    TB = [16, 24]
    FB = 32
    ACC = 88
    VTD, VTR0, VTR1, VFD = 4, 5, 6, 7

    def g_setup(self, pitch, swapped, tbit):
        self(f"""v_lshrrev_b32 v1, 3, v0
        v_and_b32 v2, 7, v0
        v_bfe_u32 v3, v0, 4, 1
        v_lshlrev_b32 v3, 2, v3
        v_xor_b32 v2, v2, v3
        v_mul_u32_u24 v{self.VTD}, {pitch}, v1
        v_lshl_add_u32 v{self.VTD}, v2, 4, v{self.VTD}
        v_lshlrev_b32 v{self.VFD}, 4, v0
        v_bfe_u32 v1, v0, 2, 2
        v_lshrrev_b32 v2, 5, v0
        v_lshl_add_u32 v3, v2, {2 if swapped else 3}, v1
        v_lshlrev_b32 v3, 7, v3
        v_lshrrev_b32 v1, 1, v1
        s_bfe_u32 s52, s54, {0x10000 | tbit}
        v_xor_b32 v1, s52, v1
        v_lshl_add_u32 v3, v1, 6, v3
        v_bfe_u32 v1, v0, 4, 1
        v_lshl_add_u32 v3, v1, 5, v3
        v_and_b32 v1, 3, v0
        v_lshl_add_u32 v3, v1, 3, v3
        s_mul_i32 s58, s54, {GRING}
        s_add_u32 s58, s58, {LDS_G}
        v_add_u32 v{self.VTR0}, s58, v3
        v_xor_b32 v{self.VTR1}, 64, v{self.VTR0}""")

    def g_issue_T(self, i, n, srdT, pitch):
        slot = i % R
        self(f"""s_mul_i32 s52, s74, {16*pitch}
        s_add_u32 m0, s58, {slot*2048}
        s_add_u32 s52, s52, s76
        buffer_load_dwordx4 v{self.VTD}, s[{srdT}:{srdT+3}], s52 offen lds
        s_add_u32 s52, s52, {8*pitch-1024}
        buffer_load_dwordx4 v{self.VTD}, s[{srdT}:{srdT+3}], s52 offen offset:1024 lds
        s_add_u32 s74, s74, 1
        s_cmp_eq_u32 s74, {n}
        s_cselect_b32 s74, 0, s74""")

    def g_issue_F(self, i, n):
        f = self.FB + (i % R) * 8
        self(f"""s_lshl_b32 s52, s75, 10
        s_add_u32 s53, s52, s77
        buffer_load_dwordx4 v[{f}:{f+3}], v{self.VFD}, s[{SRD_WS}:{SRD_WS+3}], s53 offen{self.sc}
        s_add_u32 s53, s52, s78
        buffer_load_dwordx4 v[{f+4}:{f+7}], v{self.VFD}, s[{SRD_WS}:{SRD_WS+3}], s53 offen{self.sc}
        s_add_u32 s75, s75, 1
        s_cmp_eq_u32 s75, {n}
        s_cselect_b32 s75, 0, s75""")

    def g_reads(self, i, swapped):
        t = self.TB[i & 1]
        o = (i % R) * 2048
        d = 1024 if swapped else 512
        self(f"""ds_read_b64_tr_b16 v[{t}:{t+1}], v{self.VTR0} offset:{o}
        ds_read_b64_tr_b16 v[{t+2}:{t+3}], v{self.VTR0} offset:{o+d}
        ds_read_b64_tr_b16 v[{t+4}:{t+5}], v{self.VTR1} offset:{o}
        ds_read_b64_tr_b16 v[{t+6}:{t+7}], v{self.VTR1} offset:{o+d}""")

    def g_mm(self, i, kind, first):
        t = self.TB[i & 1]
        f = self.FB + (i % R) * 8
        for q in range(4):
            a = self.ACC + 16 * q
            c = "0" if first else f"v[{a}:{a+15}]"
            if kind == "g1":
                A, B = t + 4 * (q & 1), f + 4 * (q >> 1)
            elif kind == "g2":
                A, B = f + 4 * (q >> 1), t + 4 * (q & 1)
            else:
                A, B = t + 4 * (q >> 1), f + 4 * (q & 1)
            self(f"v_mfma_f32_32x32x16_bf16 v[{a}:{a+15}], v[{A}:{A+3}], v[{B}:{B+3}], {c}")

    def g_pass(self, n, kind, srdT, pitch, swapped, zero_first, t_pre=0, before_slot6=None):
        order = []

        def wait_for(step):
            last = max(k for k, s in enumerate(order) if s <= step)
            cnt = len(order) - 1 - last
            self(f"s_waitcnt vmcnt({min(cnt, 63)})")

        order += [s for s in range(t_pre) for _ in range(2)]
        for i in range(min(D, n)):
            if i >= t_pre:
                self.g_issue_T(i, n, srdT, pitch); order += [i, i]
            self.g_issue_F(i, n); order += [i, i]
        wait_for(0)
        self.g_reads(0, swapped)
        for i in range(n):
            if i + 1 < n:
                wait_for(i + 1)
                self.g_reads(i + 1, swapped)
                self("s_waitcnt lgkmcnt(4)")
            else:
                self("s_waitcnt lgkmcnt(0)")
            self.g_mm(i, kind, zero_first and i == 0)
            j = i + D
            if j < n:
                if i == 0 and before_slot6:
                    before_slot6()
                if j >= t_pre:
                    self.g_issue_T(j, n, srdT, pitch); order += [j, j]
                self.g_issue_F(j, n); order += [j, j]

    def g_reduce(self, sigval):
        A = self.ACC
        self(f"v_lshl_add_u32 v1, v0, 4, s58\ns_nop 10")
        for t in range(1, 4):
            for k in range(4):
                r = A + 16 * t + 4 * k
                self(f"ds_write_b128 v1, v[{r}:{r+3}] offset:{(t-1)*4096 + k*1024}")
        self.signal(self.VG_SIG, 2, sigval)
        for t in range(1, 4):
            self(f"""s_xor_b32 s52, s54, {t}
            s_mul_i32 s52, s52, {GRING}
            s_add_u32 s52, s52, {LDS_G + (t-1)*4096}
            v_lshl_add_u32 v{7+t}, v0, 4, s52""")
        self.wait(self.VG_POLL, 2, sigval)
        for t in range(1, 4):
            for k in range(4):
                r = A + 16 * t + 4 * k
                self(f"ds_read_b128 v[{r}:{r+3}], v{7+t} offset:{k*1024}")
        self.signal(self.VG_SIG, 2, sigval + 1)
        for t in range(1, 4):
            self(f"s_waitcnt lgkmcnt({(3-t)*4+1})")
            for k in range(16):
                self(f"v_add_f32 v{A+k}, v{A+k}, v{A+16*t+k}")

    def g1_map(self):
        self(f"""s_sub_u32 s54, s{S_WAVE}, 8
        s_and_b32 s52, s{S_WG}, 7
        s_lshr_b32 s82, s{S_WG}, 3
        s_and_b32 s53, s52, 1
        s_mul_i32 s53, s53, 28
        s_add_u32 s53, s53, s82
        s_lshr_b32 s52, s52, 1
        s_mul_i32 s80, s52, 7
        s_lshr_b32 s52, s53, 3
        s_add_u32 s80, s80, s52
        s_and_b32 s81, s53, 7""")

    def g1_setup(self):
        self.srd(SRD_3, P_W1, 2048 * 3584)
        self.srd(SRD_4, P_B1, 3584)
        self.g_setup(3584, False, 0)
        self(f"""s_lshl2_add_u32 s74, s81, s80
        s_and_b32 s74, s74, 31
        s_mov_b32 s75, s74
        s_mul_i32 s76, s54, {512*3584}
        s_lshl_b32 s52, s80, 7
        s_add_u32 s76, s76, s52
        s_lshr_b32 s52, s54, 1
        s_lshl1_add_u32 s52, s81, s52
        s_lshl_b32 s77, s52, 17
        s_lshl_b32 s53, s54, 15
        s_add_u32 s77, s77, s53
        s_add_u32 s77, s77, {WS_HT}
        s_xor_b32 s78, s77, {1 << 17}""")

    def g1_main(self, t_pre, sig0):
        A = self.ACC
        if self.mega:
            self(f"""s_lshr_b32 s52, s81, 1
            s_lshl_b32 s52, s52, 10
            s_lshl_b32 s53, s54, 8
            s_add_u32 s52, s52, s53
            s_add_u32 s52, s52, {WS_FH}
            v_lshl_add_u32 v1, v0, 2, s52""")
            self.gwait(1, 2)
        b6 = (lambda: self.wait(self.VG_POLL, 2, sig0)) if sig0 else None
        self.g_pass(32, "g1", SRD_3, 3584, False, True, t_pre=t_pre, before_slot6=b6)
        self(f"""v_lshrrev_b32 v1, 5, v0
        v_lshlrev_b32 v1, 3, v1
        s_and_b32 s53, s54, 1
        s_lshl1_add_u32 s83, s80, s53
        s_lshl_b32 s52, s83, 6""")
        for g in range(4):
            self(f"buffer_load_dwordx2 v[{16+2*g}:{17+2*g}], v1, s[{SRD_4}:{SRD_4+3}], s52 offen offset:{16*g}")
        self.g_reduce(sig0 + 1)
        self("s_waitcnt vmcnt(0)")
        k0 = -2.0 * math.sqrt(2.0 / math.pi) * LOG2E
        k1 = k0 * 0.044715
        self(f"s_mov_b32 s52, {f32(k1)}\nv_mov_b32 v3, {f32(k0)}")
        T = A + 16
        for k in range(16):
            src = 16 + k // 2
            if k & 1:
                self(f"v_and_b32 v{T+k}, 0xffff0000, v{src}")
            else:
                self(f"v_lshlrev_b32 v{T+k}, 16, v{src}")
        for k in range(16):
            self(f"v_add_f32 v{A+k}, v{A+k}, v{T+k}")
        for k in range(16):
            self(f"v_mul_f32 v{T+k}, v{A+k}, v{A+k}")
        for k in range(16):
            self(f"v_fma_f32 v{T+k}, v{T+k}, s52, v3")
        for k in range(16):
            self(f"v_mul_f32 v{T+k}, v{T+k}, v{A+k}")
        for k in range(16):
            self(f"v_exp_f32 v{T+k}, v{T+k}")
        for k in range(16):
            self(f"v_add_f32 v{T+k}, 1.0, v{T+k}")
        for k in range(16):
            self(f"v_rcp_f32 v{T+k}, v{T+k}")
        for k in range(16):
            self(f"v_mul_f32 v{A+k}, v{A+k}, v{T+k}")
        for k in range(8):
            self(f"v_cvt_pk_bf16_f32 v{16+k}, v{A+2*k}, v{A+2*k+1}")
        self(f"""s_lshr_b32 s52, s54, 1
        s_lshl1_add_u32 s52, s81, s52
        s_mul_i32 s53, s52, 112
        s_lshl1_add_u32 s53, s83, s53
        s_lshl_b32 s53, s53, 10
        s_add_u32 s53, s53, {WS_U}
        buffer_store_dwordx4 v[16:19], v{self.VFD}, s[{SRD_WS}:{SRD_WS+3}], s53 offen{self.sc}
        buffer_store_dwordx4 v[20:23], v{self.VFD}, s[{SRD_WS}:{SRD_WS+3}], s53 offen offset:1024{self.sc}""")
        if self.mega:
            self(f"""s_lshr_b32 s52, s54, 1
            s_mul_i32 s52, s52, 56
            s_add_u32 s52, s52, s83
            s_lshl_b32 s53, s81, 7
            s_add_u32 s52, s52, s53
            s_lshl_b32 s52, s52, 2
            s_add_u32 s52, s52, {WS_FU}""")
            self.gsignal(52, 1, 2)

    def g23(self, ring_free_val, red_val):
        A = self.ACC
        VG0, VG1, VB2 = 11, 12, 13
        self(f"""s_sub_u32 s54, s{S_WAVE}, 8
        s_and_b32 s52, s{S_WG}, 7
        s_lshr_b32 s82, s{S_WG}, 3
        s_and_b32 s80, s82, 3
        s_lshl2_add_u32 s80, s52, s80
        s_lshr_b32 s81, s82, 2""")
        self.srd(SRD_3, P_W2, 1792 * 4096)
        self.srd(SRD_4, P_WO, 512 * 1024)
        self.srd(SRD_1, P_B2, 4096)
        self.srd(SRD_2, P_OUT, 2048 * 1024)
        self.g_setup(4096, True, 0)
        self(f"""s_cmp_ge_u32 s82, 28
        s_cselect_b32 s52, 28, 0
        s_sub_u32 s74, s82, s52
        s_mov_b32 s75, s74
        s_mul_i32 s76, s54, {28*16*4096}
        s_lshl_b32 s52, s80, 7
        s_add_u32 s76, s76, s52
        s_lshr_b32 s52, s54, 1
        s_lshl1_add_u32 s52, s81, s52
        s_xor_b32 s53, s52, 1
        s_mul_i32 s77, s52, {112*1024}
        s_mul_i32 s78, s53, {112*1024}
        s_mul_i32 s53, s54, {28*1024}
        s_add_u32 s53, s53, {WS_U}
        s_add_u32 s77, s77, s53
        s_add_u32 s78, s78, s53""")
        if ring_free_val:
            self.wait(self.VG_POLL, 2, ring_free_val)
        t_pre = 0
        if self.mega:
            t_pre = D
            for i in range(D):
                self.g_issue_T(i, 28, SRD_3, 4096)
            self(f"""s_lshl_b32 s52, s81, 9
            s_add_u32 s52, s52, {WS_FU}
            v_min_u32 v1, 55, v0
            v_lshl_add_u32 v1, v1, 3, s52""")
            self.gwait(1, 2, x2=True)
        self.g_pass(28, "g2", SRD_3, 4096, True, True, t_pre=t_pre)
        self.g_setup(1024, True, 1)
        self(f"""s_and_b32 s74, s82, 7
        s_mov_b32 s75, s74
        s_lshl_b32 s76, s54, 17
        s_lshl_b32 s52, s81, 7
        s_add_u32 s76, s76, s52
        s_and_b32 s52, s54, 1
        s_lshl1_add_u32 s83, s80, s52
        s_lshl_b32 s77, s83, 15
        s_lshl_b32 s53, s54, 13
        s_add_u32 s77, s77, s53
        s_add_u32 s77, s77, {WS_O}
        s_xor_b32 s78, s77, {1 << 15}""")
        t_pre = 0
        if self.mega:
            t_pre = R
            for i in range(R):
                self.g_issue_T(i, 8, SRD_4, 1024)
            self(f"""s_lshl_b32 s52, s80, 8
            s_add_u32 s52, s52, {WS_FO}
            v_lshl_add_u32 v1, v0, 2, s52""")
            self.gwait(1, 2)
        self(f"""v_and_b32 v1, 31, v0
        v_lshlrev_b32 v2, 2, v1
        v_lshlrev_b32 v1, 1, v1
        s_lshl_b32 s52, s83, 7
        s_add_u32 s52, s52, {WS_G}
        s_xor_b32 s53, s52, 128
        buffer_load_dword v{VG0}, v2, s[{SRD_WS}:{SRD_WS+3}], s52 offen{self.sc}
        buffer_load_dword v{VG1}, v2, s[{SRD_WS}:{SRD_WS+3}], s53 offen{self.sc}
        s_lshl_b32 s52, s83, 6
        buffer_load_ushort v{VB2}, v1, s[{SRD_1}:{SRD_1+3}], s52 offen""")
        n = 8
        order = [s for s in range(t_pre) for _ in range(2)] + [-1, -1, -1]
        for i in range(min(R, n)):
            if i >= t_pre:
                self.g_issue_T(i, n, SRD_4, 1024); order += [i, i]
            self.g_issue_F(i, n); order += [i, i]

        def wait_for(step):
            last = max(k for k, s in enumerate(order) if s <= step)
            self(f"s_waitcnt vmcnt({min(len(order) - 1 - last, 63)})")

        wait_for(-1)
        self(f"v_sub_f32 v{VG0}, 1.0, v{VG0}\nv_sub_f32 v{VG1}, 1.0, v{VG1}\nv_lshlrev_b32 v{VB2}, 16, v{VB2}")
        for q in range(4):
            for k in range(16):
                self(f"v_mul_f32 v{A+16*q+k}, v{A+16*q+k}, v{VG1 if q & 1 else VG0}")
        for k in range(16):
            self(f"v_fmac_f32 v{A+k}, v{VB2}, v{VG0}")
        wait_for(0)
        self.g_reads(0, True)
        for i in range(n):
            if i + 1 < n:
                wait_for(i + 1)
                self.g_reads(i + 1, True)
                self("s_waitcnt lgkmcnt(4)")
            else:
                self("s_waitcnt lgkmcnt(0)")
            self.g_mm(i, "op", False)
            if i == 0:
                self.g_issue_T(7, n, SRD_4, 1024); order += [7, 7]
                self.g_issue_F(7, n); order += [7, 7]
        self.g_reduce(red_val)
        for k in range(8):
            self(f"v_cvt_pk_bf16_f32 v{16+k}, v{A+2*k}, v{A+2*k+1}")
        self(f"""v_and_b32 v1, 31, v0
        v_lshlrev_b32 v1, 10, v1
        v_lshrrev_b32 v2, 5, v0
        v_lshl_add_u32 v1, v2, 4, v1
        s_lshr_b32 s52, s54, 1
        s_lshl1_add_u32 s52, s81, s52
        s_lshl_b32 s52, s52, 6
        s_lshl_b32 s53, s83, 15
        s_add_u32 s52, s52, s53
        v_permlane32_swap_b32 v16, v18
        v_permlane32_swap_b32 v17, v19
        v_permlane32_swap_b32 v20, v22
        v_permlane32_swap_b32 v21, v23
        s_nop 1
        buffer_store_dwordx4 v[16:19], v1, s[{SRD_2}:{SRD_2+3}], s52 offen
        buffer_store_dwordx4 v[20:23], v1, s[{SRD_2}:{SRD_2+3}], s52 offen offset:32""")
        if self.mega:
            l = self.lab("EP")
            self(f"""s_lshl4_add_u32 s52, s{S_WG}, s54
            s_cmp_lg_u32 s52, 0
            s_cbranch_scc1 {l}
            s_mov_b32 s52, {WS_EPOCH}""")
            self.gsignal(52, 1, 2)
            self(f"{l}:")


def descriptor(label, nv):
    return f""".amdhsa_kernel {label}
  .amdhsa_next_free_vgpr {nv}
  .amdhsa_next_free_sgpr 96
  .amdhsa_accum_offset {nv}
  .amdhsa_group_segment_fixed_size 0
  .amdhsa_kernarg_size 96
  .amdhsa_user_sgpr_count 2
  .amdhsa_user_sgpr_kernarg_segment_ptr 1
  .amdhsa_system_sgpr_workgroup_id_x 1
.end_amdhsa_kernel
"""


HEAD = open("cdna_kernels/" + NAME + ".s.ref").read().split("; Override launch")[0]


def build_multi(extra_empty=0):
    g = Gen(False)
    launches = [("k1_kernel", 768), ("k2_kernel", 768), ("k3_kernel", 256)]
    g.prologue("k1_kernel", 0, "K1_exit")
    g(f"s_cmp_ge_u32 s{S_WAVE}, 8\ns_cbranch_scc1 K1_g\ns_cmp_ge_u32 s{S_WAVE}, 4\ns_cbranch_scc1 K1_l")
    g.qkv_compute()
    g("K1_exit:\ns_endpgm\nK1_l:")
    g.qkv_loader()
    g("s_endpgm\nK1_g:")
    g.ln_issue()
    g.sync_regs(g.VG_SIG, g.VG_POLL, 8, 4)
    g.barrier0()
    g.ln(0)
    g("s_endpgm")
    g.prologue("k2_kernel", 0, "K2_exit")
    g(f"s_cmp_ge_u32 s{S_WAVE}, 8\ns_cbranch_scc1 K2_g")
    g.attention(True)
    g("K2_g:")
    g.sync_regs(g.VG_SIG, g.VG_POLL, 8, 4)
    g.barrier0()
    g.g1_map()
    g("s_cmp_ge_u32 s82, 28\ns_cbranch_scc1 K2_exit")
    g.g1_setup()
    g.g1_main(0, 0)
    g("K2_exit:\ns_endpgm")
    g.prologue("k3_kernel", 8, "K3_exit")
    g.sync_regs(g.VG_SIG, g.VG_POLL, 8, 4)
    g.barrier0()
    g.g23(0, 1)
    g("K3_exit:\ns_endpgm")
    kernels = [k for k, _ in launches]
    if extra_empty:
        g(".p2align 8\n.type k0_kernel,@function\nk0_kernel:\ns_endpgm")
        launches += [("k0_kernel", 64)] * extra_empty
        kernels.append("k0_kernel")
    out = HEAD
    for k, b in launches:
        out += f"; @launch kernel={k} grid=(256,1,1) block=({b},1,1) lds={LDS_TOTAL if k != 'k0_kernel' else 0}\n"
    out += '.amdgcn_target "amdgcn-amd-amdhsa--gfx950"\n.text\n'
    out += "\n".join(g.L) + '\n.section .rodata,"a"\n'
    for k in kernels:
        out += ".p2align 6\n" + descriptor(k, 168)
    return out


def build_mega():
    g = Gen(True)
    k = NAME + "_kernel"
    g(f".globl {k}")
    g.prologue(k, 0, "M_exit")
    g(f"s_cmp_ge_u32 s{S_WAVE}, 8\ns_cbranch_scc1 M_g\ns_cmp_ge_u32 s{S_WAVE}, 4\ns_cbranch_scc1 M_l")
    g.qkv_compute()
    g("s_branch M_attn\nM_l:")
    g.qkv_loader()
    g("M_attn:")
    g.attention(False)
    g("M_g:")
    g.ln_issue()
    g.g1_map()
    g.g1_setup()
    g("s_cmp_ge_u32 s82, 28\ns_cbranch_scc1 M_nog1a")
    for i in range(D):
        g.g_issue_T(i, 32, SRD_3, 3584)
    g("M_nog1a:")
    g(f"s_lshl_b32 s55, s{S_WG}, 3\ns_lshl1_add_u32 s55, s54, s55")
    g.sync_regs(g.VG_SIG, g.VG_POLL, 8, 4)
    g.barrier0()
    g("s_cmp_ge_u32 s82, 28\ns_cbranch_scc0 M_ln\ns_waitcnt vmcnt(0)\nM_ln:")
    g.ln(2 * D)
    g("s_cmp_ge_u32 s82, 28\ns_cbranch_scc1 M_nog1b")
    g.g1_main(D, 2)
    g("s_branch M_g2\nM_nog1b:")
    g.signal(g.VG_SIG, 2, 4)
    g("M_g2:")
    g.g23(4, 5)
    g("M_exit:\ns_endpgm")
    out = HEAD + f"; @launch grid=(256,1,1) block=(768,1,1) lds={LDS_TOTAL}\n"
    out += '.amdgcn_target "amdgcn-amd-amdhsa--gfx950"\n.text\n'
    out += "\n".join(g.L) + '\n.section .rodata,"a"\n.p2align 6\n' + descriptor(k, 168)
    return out


if __name__ == "__main__":
    mode = sys.argv[1]
    path = sys.argv[2]
    if mode == "multi":
        s = build_multi(int(sys.argv[3]) if len(sys.argv) > 3 else 0)
    else:
        s = build_mega()
    open(path, "w").write(s)
```

```python
import sys, math

NAME = "gated_mix__softmax_full_mha__mixer_token_mlp__prompt"

WS_Q = 0x000000
WS_KV = 0x200000
WS_HT = 0x600000
WS_U = 0x800000
WS_O = 0xA00000
WS_G = 0xC00000
WS_FH = 0xD00000
WS_EPOCH = 0xD05000
WS_FQ = 0xD20000
WS_FU = 0xD40000
WS_FO = 0xD80000
WS_STAMP = 0xE00000
WS_SIZE = 0x1000000

LDS_A = 0
LDS_G = 49152
LDS_LN = 131072
LNP = 1088
GRING = 14336
R = 7
D = 6
LDS_SYNC = LDS_LN + 8 * LNP
LDS_TOTAL = LDS_SYNC + 64
OOB = 0x40000

S_WG, S_WAVE = 2, 3
SRD_WS, SRD_1, SRD_2, SRD_3, SRD_4 = 4, 8, 12, 40, 44
P_X, P_WQKV, P_WO, P_W1, P_B1, P_W2, P_B2, P_GW, P_OUT, P_DBG, P_WS = 16, 18, 20, 24, 26, 28, 30, 32, 34, 36, 38
S_SPIN, S_TAG = 48, 49
S_VMASK = 50

LOG2E = 1.4426950408889634


def f32(x):
    import struct
    return "0x%08x" % struct.unpack("<I", struct.pack("<f", x))[0]


class Gen:
    def __init__(self, mega, prof=False):
        self.L = []
        self.prof = prof
        self.kid = 0
        self.mega = mega
        self.nlab = 0
        self.sc = " sc1" if mega else ""
        self.gprio = 0
        self.scramble = 0
        self.cyc = False
        self.gstart = 8
        self.qfl = 3

    def __call__(self, s):
        for line in s.split("\n"):
            line = line.strip()
            if line:
                self.L.append("    " + line if not line.endswith(":") else line)

    def stamp(self, k, cyc=False):
        if self.prof:
            self(f"{'s_memtime' if cyc else 's_memrealtime'} s[{84+2*k}:{85+2*k}]")

    def end(self):
        if self.prof:
            self("s_waitcnt lgkmcnt(0)\nv_mov_b32 v1, 0")
            self(f"s_memrealtime s[100:101]\ns_waitcnt vmcnt(0) lgkmcnt(0)")
            for k in range(9):
                self(f"v_writelane_b32 v1, s{84+2*k}, {k}")
            self(f"""s_mul_i32 s52, s{S_WG}, 12
            s_add_u32 s52, s52, s{S_WAVE}
            s_lshl_b32 s52, s52, 6
            s_add_u32 s52, s52, {WS_STAMP + self.kid * 0x40000}
            v_lshlrev_b32 v2, 2, v0
            v_cmp_gt_u32 vcc, 16, v0
            s_and_saveexec_b64 s[54:55], vcc
            buffer_store_dword v1, v2, s[{SRD_WS}:{SRD_WS+3}], s52 offen""")
        self("s_endpgm")

    def lab(self, base="L"):
        self.nlab += 1
        return f"{base}_{self.nlab}"

    def srd(self, s, p, nbytes):
        self(f"s_mov_b32 s{s}, s{p}\ns_mov_b32 s{s+1}, s{p+1}\ns_mov_b32 s{s+2}, {nbytes}\ns_mov_b32 s{s+3}, 0x00020000")

    def signal(self, vsig, vtmp, val):
        self(f"v_mov_b32 v{vtmp}, {val}\nds_write_b32 v{vsig}, v{vtmp}")

    def wait(self, vpoll, vtmp, val, sleep=False):
        l0, l1 = self.lab("W"), self.lab("W")
        self(f"""{l0}:
        ds_read_b32 v{vtmp}, v{vpoll}
        s_waitcnt lgkmcnt(0)
        v_cmp_gt_u32 vcc, {val}, v{vtmp}
        s_cbranch_vccz {l1}
        {"s_sleep 2" if sleep else ""}
        s_sub_u32 s{S_SPIN}, s{S_SPIN}, 1
        s_cbranch_scc0 {l0}
        s_mov_b32 s{S_SPIN}, 0
        {l1}:""")

    def gwait(self, vaddr, vtmp, sleep=4):
        if not self.mega:
            return
        l0, l1 = self.lab("GW"), self.lab("GW")
        self(f"""{l0}:
        buffer_load_dword v{vtmp}, v{vaddr}, s[{SRD_WS}:{SRD_WS+3}], 0 offen sc1
        s_waitcnt vmcnt(0)
        v_cmp_ne_u32 vcc, s{S_TAG}, v{vtmp}
        s_cbranch_vccz {l1}
        s_sleep {sleep}
        s_sub_u32 s{S_SPIN}, s{S_SPIN}, 1
        s_cbranch_scc0 {l0}
        s_mov_b32 s{S_SPIN}, 0
        {l1}:""")

    def gsignal(self, soff, vtmp, vtmp2):
        if not self.mega:
            return
        self(f"""v_mov_b32 v{vtmp}, s{S_TAG}
        v_cmp_eq_u32 vcc, 0, v0
        v_mov_b32 v{vtmp2}, 0x7ffffff0
        s_nop 0
        v_cndmask_b32 v{vtmp2}, v{vtmp2}, 0, vcc
        s_waitcnt vmcnt(0)
        buffer_store_dword v{vtmp}, v{vtmp2}, s[{SRD_WS}:{SRD_WS+3}], s{soff} offen sc1""")

    def prologue(self, label, wave_off, exit_label):
        self(f""".p2align 8
        .type {label},@function
        {label}:
        s_cmp_ge_u32 s2, 256
        s_cbranch_scc1 {exit_label}""")
        if self.prof:
            for k in range(84, 102):
                self(f"s_mov_b32 s{k}, 0")
        self.stamp(0)
        if self.scramble:
            self("s_lshr_b32 s52, s2, 5\ns_and_b32 s2, s2, 31\ns_lshl_b32 s2, s2, 3\ns_or_b32 s2, s2, s52")
        self(f"""s_load_dwordx16 s[16:31], s[0:1], 0
        s_load_dwordx8 s[32:39], s[0:1], 64
        v_lshrrev_b32 v1, 6, v0
        v_and_b32 v0, 63, v0
        s_mov_b32 s{S_SPIN}, 0x40000
        v_readfirstlane_b32 s{S_WAVE}, v1
        v_lshlrev_b32 v2, 2, v0
        v_add_u32 v2, {LDS_SYNC}, v2
        v_mov_b32 v3, 0""")
        if wave_off:
            self(f"s_add_u32 s{S_WAVE}, s{S_WAVE}, {wave_off}")
        l = self.lab("P")
        self(f"""s_cmp_lg_u32 s{S_WAVE}, 8
        s_cbranch_scc1 {l}
        ds_write_b32 v2, v3
        {l}:
        s_waitcnt lgkmcnt(0)""")
        if self.mega:
            self(f"""s_add_u32 s52, s{P_WS}, {WS_EPOCH}
            s_addc_u32 s53, s{P_WS+1}, 0
            s_load_dword s{S_TAG}, s[52:53], 0""")
        self("s_barrier")
        self.srd(SRD_WS, P_WS, WS_SIZE)

    def get_tag(self):
        if self.mega:
            self(f"s_waitcnt lgkmcnt(0)\ns_add_u32 s{S_TAG}, s{S_TAG}, 0x9E3779B9")

    def sync_regs(self, vsig, vpoll, first, count):
        self(f"""s_lshl_b32 s52, s{S_WAVE}, 2
        s_add_u32 s52, s52, {LDS_SYNC}
        v_mov_b32 v{vsig}, {OOB}
        v_mov_b32 v{vpoll}, s52
        v_cmp_eq_u32 vcc, 0, v0
        s_nop 1
        v_cndmask_b32 v{vsig}, v{vsig}, v{vpoll}, vcc
        v_and_b32 v{vpoll}, {count-1}, v0
        v_lshlrev_b32 v{vpoll}, 2, v{vpoll}
        v_add_u32 v{vpoll}, {LDS_SYNC + 4*first}, v{vpoll}""")

    def allreduce(self, regs, tmps, op="v_add_f32"):
        for sh in (1, 2, 4, 8):
            for r in regs:
                self(f"{op}_dpp v{r}, v{r}, v{r} row_ror:{sh} row_mask:0xf bank_mask:0xf")
            if len(regs) < 3:
                self("s_nop 1")
        for sw in ("v_permlane16_swap_b32", "v_permlane32_swap_b32"):
            for r, t in zip(regs, tmps):
                self(f"v_mov_b32 v{t}, v{r}")
            self("s_nop 1")
            for r, t in zip(regs, tmps):
                self(f"{sw} v{r}, v{t}")
            self("s_nop 1")
            for r, t in zip(regs, tmps):
                self(f"{op} v{r}, v{r}, v{t}")
            self("s_nop 1")

    VG_SIG, VG_POLL = 14, 15

    def ln_issue(self):
        self.srd(SRD_1, P_X, 2048 * 1024)
        self.srd(SRD_2, P_GW, 1024)
        self(f"""s_sub_u32 s54, s{S_WAVE}, 8
        s_and_b32 s79, s{S_WG}, 7
        s_lshl_b32 s79, s79, 5
        s_lshr_b32 s55, s{S_WG}, 3
        s_add_u32 s79, s79, s55
        s_lshl_b32 s55, s79, 3
        s_lshl1_add_u32 s55, s54, s55
        s_lshl_b32 s56, s55, 10
        v_lshlrev_b32 v1, 4, v0
        buffer_load_dwordx4 v[152:155], v1, s[{SRD_1}:{SRD_1+3}], s56 offen
        buffer_load_dwordx4 v[156:159], v1, s[{SRD_1}:{SRD_1+3}], s56 offen offset:1024
        buffer_load_dwordx4 v[160:163], v1, s[{SRD_2}:{SRD_2+3}], 0 offen""")

    def ln(self, vm_after):
        X0, X1, GW, T = 88, 96, 104, 112
        self.get_tag()
        self(f"s_waitcnt vmcnt({vm_after})")
        self.stamp(1)
        for (src, dst) in ((152, X0), (156, X1), (160, GW)):
            for i in range(4):
                self(f"v_lshlrev_b32 v{dst+2*i}, 16, v{src+i}\nv_and_b32 v{dst+2*i+1}, 0xffff0000, v{src+i}")
        s0, s1, d0, d1 = T, T + 1, T + 2, T + 3
        self(f"v_add_f32 v{s0}, v{X0}, v{X0+1}\nv_add_f32 v{s1}, v{X1}, v{X1+1}")
        self(f"v_mul_f32 v{d0}, v{X0}, v{GW}\nv_mul_f32 v{d1}, v{X1}, v{GW}")
        for i in range(2, 8):
            self(f"v_add_f32 v{s0}, v{s0}, v{X0+i}\nv_add_f32 v{s1}, v{s1}, v{X1+i}")
        for i in range(1, 8):
            self(f"v_fmac_f32 v{d0}, v{X0+i}, v{GW+i}\nv_fmac_f32 v{d1}, v{X1+i}, v{GW+i}")
        self("s_nop 1")
        self.allreduce([s0, s1, d0, d1], [T + 4, T + 5, T + 6, T + 7])
        self(f"v_mul_f32 v{s0}, {f32(1/512)}, v{s0}\nv_mul_f32 v{s1}, {f32(1/512)}, v{s1}")
        for i in range(8):
            self(f"v_sub_f32 v{X0+i}, v{X0+i}, v{s0}\nv_sub_f32 v{X1+i}, v{X1+i}, v{s1}")
        self(f"v_mul_f32 v{s0}, v{X0}, v{X0}\nv_mul_f32 v{s1}, v{X1}, v{X1}")
        for i in range(1, 8):
            self(f"v_fmac_f32 v{s0}, v{X0+i}, v{X0+i}\nv_fmac_f32 v{s1}, v{X1+i}, v{X1+i}")
        self("s_nop 1")
        self.allreduce([s0, s1], [T + 4, T + 5])
        self(f"""v_mov_b32 v{T+4}, {f32(1e-5)}
        v_fmac_f32 v{T+4}, {f32(1/512)}, v{s0}
        v_mov_b32 v{T+5}, {f32(1e-5)}
        v_fmac_f32 v{T+5}, {f32(1/512)}, v{s1}
        v_rsq_f32 v{s0}, v{T+4}
        v_rsq_f32 v{s1}, v{T+5}
        v_cmp_eq_u32 vcc, 0, v0
        v_mul_f32 v{d0}, {f32(-LOG2E)}, v{d0}
        v_mul_f32 v{d1}, {f32(-LOG2E)}, v{d1}
        v_cndmask_b32 v{d0}, v{d1}, v{d0}, vcc
        v_exp_f32 v{d0}, v{d0}""")
        for i in range(8):
            self(f"v_mul_f32 v{X0+i}, v{X0+i}, v{s0}\nv_mul_f32 v{X1+i}, v{X1+i}, v{s1}")
        self(f"v_add_f32 v{d0}, 1.0, v{d0}\nv_rcp_f32 v{d0}, v{d0}")
        for i in range(4):
            self(f"v_cvt_pk_bf16_f32 v{152+i}, v{X0+2*i}, v{X0+2*i+1}\nv_cvt_pk_bf16_f32 v{156+i}, v{X1+2*i}, v{X1+2*i+1}")
        self(f"""s_mul_i32 s56, s54, {2*LNP}
        s_add_u32 s56, s56, {LDS_LN}
        v_lshl_add_u32 v1, v0, 4, s56
        ds_write_b128 v1, v[152:155]
        ds_write_b128 v1, v[156:159] offset:{LNP}
        v_lshlrev_b32 v2, 2, v0
        v_cmp_gt_u32 vcc, 2, v0
        v_mov_b32 v3, 0x7ffffff0
        s_lshl_b32 s56, s55, 2
        v_cndmask_b32 v2, v3, v2, vcc
        s_add_u32 s56, s56, {WS_G}
        buffer_store_dword v{d0}, v2, s[{SRD_WS}:{SRD_WS+3}], s56 offen{self.sc}""")
        self.signal(self.VG_SIG, 3, 1)
        self(f"""v_bfe_u32 v1, v0, 2, 2
        v_mul_u32_u24 v1, {LNP}, v1
        v_lshrrev_b32 v2, 4, v0
        v_lshl_add_u32 v1, v2, 5, v1
        v_and_b32 v2, 3, v0
        v_lshl_add_u32 v1, v2, 3, v1
        s_lshl_b32 s56, s54, 8
        s_add_u32 s56, s56, {LDS_LN}
        v_add_u32 v1, s56, v1""")
        self.wait(self.VG_POLL, 3, 1)
        self(f"""ds_read_b64_tr_b16 v[152:153], v1
        ds_read_b64_tr_b16 v[154:155], v1 offset:{4*LNP}
        ds_read_b64_tr_b16 v[156:157], v1 offset:128
        ds_read_b64_tr_b16 v[158:159], v1 offset:{4*LNP+128}""")
        self(f"""v_lshrrev_b32 v1, 5, v0
        v_lshlrev_b32 v1, 17, v1
        v_and_b32 v2, 31, v0
        v_lshl_add_u32 v1, v2, 4, v1
        s_lshl_b32 s56, s54, 19
        s_lshr_b32 s57, s79, 1
        s_lshl_b32 s57, s57, 10
        s_add_u32 s56, s56, s57
        s_and_b32 s57, s79, 1
        s_lshl_b32 s57, s57, 9
        s_add_u32 s56, s56, s57
        s_add_u32 s56, s56, {WS_HT}
        s_add_u32 s57, s56, {2*128*1024}
        s_waitcnt lgkmcnt(0)
        buffer_store_dwordx4 v[152:155], v1, s[{SRD_WS}:{SRD_WS+3}], s56 offen{self.sc}
        buffer_store_dwordx4 v[156:159], v1, s[{SRD_WS}:{SRD_WS+3}], s57 offen{self.sc}""")
        if self.mega:
            self(f"""s_lshl_b32 s56, s54, 10
            s_lshl2_add_u32 s56, s79, s56
            s_add_u32 s56, s56, {WS_FH}""")
            self.gsignal(56, 2, 3)

    def qkv_map(self):
        self(f"""s_and_b32 s52, s{S_WG}, 7
        s_lshr_b32 s53, s{S_WG}, 3
        s_lshr_b32 s60, s52, 1
        s_lshl_b32 s60, s60, 3
        s_and_b32 s54, s53, 7
        s_add_u32 s60, s60, s54
        s_and_b32 s61, s52, 1
        s_lshl_b32 s61, s61, 2
        s_lshr_b32 s54, s53, 3
        s_add_u32 s61, s61, s54
        s_lshl1_add_u32 s62, s54, s53
        s_add_u32 s62, s62, s52
        s_and_b32 s62, s62, 7""")

    VA_SIG, VA_POLL, VA_POLL2 = 104, 105, 106

    def qkv_loader(self):
        self.srd(SRD_1, P_X, 2048 * 1024)
        self.srd(SRD_2, P_WQKV, 512 * 3072)
        self.qkv_map()
        self(f"""s_sub_u32 s71, s{S_WAVE}, 4
        v_lshrrev_b32 v1, 3, v0
        v_and_b32 v2, 7, v0
        v_lshrrev_b32 v3, 4, v0
        v_xor_b32 v4, v2, v3
        v_xor_b32 v5, 4, v4
        v_lshlrev_b32 v4, 4, v4
        v_lshl_add_u32 v4, v1, 10, v4
        v_lshlrev_b32 v5, 4, v5
        v_lshl_add_u32 v5, v1, 10, v5
        v_add_u32 v5, {8192-1024}, v5
        v_and_b32 v3, 1, v3
        v_lshlrev_b32 v3, 2, v3
        v_xor_b32 v2, v2, v3
        v_mul_u32_u24 v6, 3072, v1
        v_lshl_add_u32 v6, v2, 4, v6
        v_add_u32 v7, {8*3072-1024}, v6
        s_lshl_b32 s66, s60, 16
        s_lshl_b32 s52, s71, 14
        s_add_u32 s66, s66, s52
        s_mul_i32 s68, s71, {16*3072}
        s_lshl_b32 s52, s61, 7
        s_add_u32 s68, s68, s52
        s_lshl_b32 s67, s71, 11
        s_mul_i32 s69, s71, 6144
        s_add_u32 s69, s69, 8192
        s_mov_b32 s72, 0""")

        def issue():
            self(f"""s_mov_b32 m0, s67
            s_add_u32 s67, s67, 32768
            buffer_load_dwordx4 v4, s[{SRD_1}:{SRD_1+3}], s66 offen lds
            buffer_load_dwordx4 v5, s[{SRD_1}:{SRD_1+3}], s66 offen offset:1024 lds
            s_mov_b32 m0, s69
            s_add_u32 s66, s66, 128
            buffer_load_dwordx4 v6, s[{SRD_2}:{SRD_2+3}], s68 offen lds
            buffer_load_dwordx4 v7, s[{SRD_2}:{SRD_2+3}], s68 offen offset:1024 lds
            s_add_u32 m0, s69, 1024
            s_and_b32 s67, s67, 0x1ffff
            buffer_load_dwordx4 v6, s[{SRD_2}:{SRD_2+3}], s68 offen offset:1024 lds
            buffer_load_dwordx4 v7, s[{SRD_2}:{SRD_2+3}], s68 offen offset:2048 lds
            s_add_u32 m0, s69, 2048
            s_add_u32 s69, s69, 32768
            buffer_load_dwordx4 v6, s[{SRD_2}:{SRD_2+3}], s68 offen offset:2048 lds
            buffer_load_dwordx4 v7, s[{SRD_2}:{SRD_2+3}], s68 offen offset:3072 lds
            s_and_b32 s69, s69, 0x1ffff
            s_add_u32 s68, s68, {64*3072}
            s_add_u32 s72, s72, 1""")

        for _ in range(self.qfl - 1):
            issue()
        self.sync_regs(self.VA_SIG, self.VA_POLL, 0, 4)
        self.get_tag()
        lp, nw = self.lab("QL"), self.lab("QN")
        self(f"{lp}:\ns_cmp_lt_u32 s72, 4\ns_cbranch_scc1 {nw}\ns_sub_u32 s73, s72, 3")
        self.wait(self.VA_POLL, 1, "s73")
        self(f"{nw}:\ns_sub_u32 s73, s72, {self.qfl - 2}")
        issue()
        self(f"s_waitcnt vmcnt({8 * (self.qfl - 1)})")
        self.signal(self.VA_SIG, 1, "s73")
        self(f"s_cmp_lt_u32 s72, 8\ns_cbranch_scc1 {lp}")
        for k in range(self.qfl - 2, -1, -1):
            self(f"s_waitcnt vmcnt({8 * k})")
            self.signal(self.VA_SIG, 1, 8 - k)

    def qkv_compute(self):
        XA, WA = 4, 8
        FR = [12, 28, 108, 124]
        AQ, AK, AV = 44, 60, 76
        self.qkv_map()
        self(f"""s_and_b32 s64, s{S_WAVE}, 1
        s_lshr_b32 s65, s{S_WAVE}, 1
        v_and_b32 v1, 31, v0
        v_lshrrev_b32 v2, 5, v0
        v_bfe_u32 v3, v0, 1, 3
        v_xor_b32 v3, v3, v2
        v_lshlrev_b32 v3, 4, v3
        v_lshl_add_u32 v{XA}, v1, 7, v3
        s_lshl_b32 s52, s64, 12
        v_add_u32 v{XA}, s52, v{XA}
        v_xor_b32 v{XA+1}, 32, v{XA}
        v_xor_b32 v{XA+2}, 64, v{XA}
        v_xor_b32 v{XA+3}, 96, v{XA}
        v_bfe_u32 v1, v0, 2, 2
        v_lshl_add_u32 v3, v2, 3, v1
        v_lshlrev_b32 v{WA}, 7, v3
        v_lshrrev_b32 v1, 1, v1
        v_xor_b32 v1, s65, v1
        v_lshl_add_u32 v{WA}, v1, 6, v{WA}
        v_bfe_u32 v1, v0, 4, 1
        v_lshl_add_u32 v{WA}, v1, 5, v{WA}
        v_and_b32 v1, 3, v0
        v_lshl_add_u32 v{WA}, v1, 3, v{WA}
        v_add_u32 v{WA}, 8192, v{WA}""")
        for i in range(48):
            self(f"v_mov_b32 v{AQ+i}, 0")
        self.sync_regs(self.VA_SIG, self.VA_POLL, 4, 4)
        self.get_tag()

        def reads(j, b):
            f = FR[b]
            self(f"ds_read_b128 v[{f}:{f+3}], v{XA+j}")
            for p in range(3):
                o = (j * 3 + p) * 2048
                self(f"ds_read_b64_tr_b16 v[{f+4+4*p}:{f+5+4*p}], v{WA} offset:{o}")
                self(f"ds_read_b64_tr_b16 v[{f+6+4*p}:{f+7+4*p}], v{WA} offset:{o+512}")

        def mm(b):
            f = FR[b]
            self(f"""v_mfma_f32_32x32x16_bf16 v[{AQ}:{AQ+15}], v[{f+4}:{f+7}], v[{f}:{f+3}], v[{AQ}:{AQ+15}]
            v_mfma_f32_32x32x16_bf16 v[{AK}:{AK+15}], v[{f+8}:{f+11}], v[{f}:{f+3}], v[{AK}:{AK+15}]
            v_mfma_f32_32x32x16_bf16 v[{AV}:{AV+15}], v[{f}:{f+3}], v[{f+12}:{f+15}], v[{AV}:{AV+15}]""")

        self("s_mov_b32 s72, 1")
        self.wait(self.VA_POLL, 1, 1)
        self.stamp(1)
        reads(0, 0)
        reads(1, 1)
        l, slow, back, lend = self.lab("QC"), self.lab("QC"), self.lab("QC"), self.lab("QC")
        self(f"{l}:")
        reads(2, 2)
        self("s_waitcnt lgkmcnt(14)")
        mm(0)
        reads(3, 3)
        self("s_waitcnt lgkmcnt(14)")
        mm(1)
        self.signal(self.VA_SIG, 1, "s72")
        self(f"""ds_read_b32 v2, v{self.VA_POLL}
        s_mov_b32 s52, 32768
        s_cmp_eq_u32 s72, 4
        s_cselect_b32 s52, {(-98304) & 0xffffffff}, s52
        s_add_u32 s72, s72, 1
        s_min_u32 s63, s72, 8""")
        for r in (XA, XA + 1, XA + 2, XA + 3, WA):
            self(f"v_add_u32 v{r}, s52, v{r}")
        self(f"s_waitcnt lgkmcnt(0)\nv_cmp_gt_u32 vcc, s63, v2\ns_cbranch_vccnz {slow}\n{back}:")
        reads(0, 0)
        mm(2)
        reads(1, 1)
        mm(3)
        self(f"s_cmp_le_u32 s72, 8\ns_cbranch_scc1 {l}\ns_branch {lend}\n{slow}:")
        mm(2)
        mm(3)
        self.wait(self.VA_POLL, 2, "s63")
        reads(0, 0)
        reads(1, 1)
        self(f"s_branch {l}\n{lend}:\ns_waitcnt lgkmcnt(0)")
        self.stamp(2)
        c = 0.25 * LOG2E
        self(f"""s_lshl1_add_u32 s66, s60, s64
        s_lshl_b32 s67, s61, 2
        s_lshl1_add_u32 s67, s65, s67
        s_lshl_b32 s68, s67, 6
        s_add_u32 s68, s68, s66
        s_lshl_b32 s69, s68, 10
        s_add_u32 s70, s69, 65536
        s_lshl_b32 s68, s68, 11
        s_add_u32 s68, s68, {WS_KV}
        s_add_u32 s71, s68, 131072
        v_lshlrev_b32 v4, 4, v0
        v_and_b32 v1, 0x33, v0
        v_bfe_u32 v2, v0, 2, 1
        v_lshl_or_b32 v1, v2, 3, v1
        v_bfe_u32 v2, v0, 3, 1
        v_lshl_or_b32 v1, v2, 2, v1
        v_lshlrev_b32 v5, 4, v1
        v_and_b32 v1, 15, v0
        v_lshlrev_b32 v6, 4, v1
        v_bfe_u32 v1, v0, 4, 1
        v_lshl_add_u32 v6, v1, 17, v6
        v_lshrrev_b32 v1, 5, v0
        v_lshl_add_u32 v6, v1, 8, v6
        s_mov_b32 s52, {f32(c)}""")
        for i in range(8):
            self(f"v_cvt_pk_bf16_f32 v{12+i}, v{AK+2*i}, v{AK+2*i+1}")
        for i in range(8):
            self(f"v_cvt_pk_bf16_f32 v{20+i}, v{AV+2*i}, v{AV+2*i+1}")
        self(f"""buffer_store_dwordx4 v[12:15], v5, s[{SRD_WS}:{SRD_WS+3}], s68 offen{self.sc}
        buffer_store_dwordx4 v[16:19], v5, s[{SRD_WS}:{SRD_WS+3}], s71 offen{self.sc}
        buffer_store_dwordx4 v[20:23], v6, s[{SRD_WS}:{SRD_WS+3}], s68 offen offset:1024{self.sc}
        buffer_store_dwordx4 v[24:27], v6, s[{SRD_WS}:{SRD_WS+3}], s68 offen offset:1536{self.sc}""")
        for i in range(16):
            self(f"v_mul_f32 v{AQ+i}, s52, v{AQ+i}")
        for i in range(8):
            self(f"v_cvt_pk_bf16_f32 v{28+i}, v{AQ+2*i}, v{AQ+2*i+1}")
        self(f"""buffer_store_dwordx4 v[28:31], v4, s[{SRD_WS}:{SRD_WS+3}], s69 offen{self.sc}
        buffer_store_dwordx4 v[32:35], v4, s[{SRD_WS}:{SRD_WS+3}], s70 offen{self.sc}""")
        if self.mega:
            self(f"""s_lshl_b32 s52, s67, 5
            s_add_u32 s52, s52, s66
            s_lshl_b32 s52, s52, 7
            s_add_u32 s52, s52, {WS_FQ}""")
            self.gsignal(52, 1, 2)

    def attention(self):
        Q, KB, VB, P2, S, O, NM = 4, [8, 12], [16, 24], 32, [40, 56], 72, 88
        VSIG, VPOLL, VK, VV, VKN, VVN, VD, VIDX, VT, VGT = 104, 105, 107, 108, 109, 110, 111, 112, 113, 114
        NS = 3
        sc = self.sc
        self(f"""s_and_b32 s52, s{S_WG}, 7
        s_lshr_b32 s53, s{S_WG}, 3
        s_and_b32 s60, s53, 3
        s_lshl2_add_u32 s60, s52, s60
        s_lshr_b32 s61, s53, 2
        s_lshl3_add_u32 s66, s61, s{S_WAVE}
        s_lshl_b32 s63, s60, 17
        s_add_u32 s63, s63, {WS_KV}
        s_lshl_b32 s52, s{S_WAVE}, 11
        s_add_u32 s67, s63, s52
        s_mov_b32 s62, s61
        v_lshlrev_b32 v{VD}, 4, v0
        s_lshl_b32 s68, s60, 6
        s_add_u32 s68, s68, s66
        s_lshl_b32 s68, s68, 10""")
        self.sync_regs(VSIG, VPOLL, 0, 8)
        base = 0
        if self.mega:
            self(f"""v_and_b32 v1, 3, v0
            v_bfe_u32 v2, v0, 2, 2
            v_lshlrev_b32 v1, 10, v1
            v_lshl_add_u32 v1, v2, 2, v1
            s_lshl_b32 s52, s66, 4
            s_add_u32 s52, s52, {WS_FH}
            v_add_u32 v1, s52, v1""")
            self.gwait(1, 2, sleep=8)
        self(f"""v_and_b32 v1, 31, v0
        v_lshlrev_b32 v{VGT}, 2, v1
        s_lshl_b32 s70, s66, 7
        s_add_u32 s70, s70, {WS_G}
        buffer_load_dword v{VGT}, v{VGT}, s[{SRD_WS}:{SRD_WS+3}], s70 offen{sc}""")
        if self.mega:
            base = 9
            lw, lj = self.lab("AW"), self.lab("AW")
            self.stamp(3)
            self(f"""s_cmp_eq_u32 s{S_WAVE}, 7
            s_cbranch_scc0 {lw}
            s_lshr_b32 s52, s60, 1
            s_lshl_b32 s52, s52, 13
            s_add_u32 s52, s52, {WS_FQ}
            v_lshl_add_u32 v1, v0, 7, s52""")
            self.wait(VPOLL, 2, 8, sleep=True)
            self.gwait(1, 2, sleep=2)
            self.signal(VSIG, 2, 9)
            self(f"s_branch {lj}\n{lw}:\nv_mov_b32 v1, {LDS_SYNC + 28}")
            self.wait(1, 2, 9, sleep=True)
            self(f"{lj}:")
            self.stamp(4)
        self(f"buffer_load_dwordx4 v[{Q}:{Q+3}], v{VD}, s[{SRD_WS}:{SRD_WS+3}], s68 offen{sc}")

        def dma():
            self(f"""s_lshl_b32 s52, s62, 14
            s_mov_b32 m0, s69
            s_add_u32 s52, s52, s67
            buffer_load_dwordx4 v{VD}, s[{SRD_WS}:{SRD_WS+3}], s52 offen{sc} lds
            buffer_load_dwordx4 v{VD}, s[{SRD_WS}:{SRD_WS+3}], s52 offen offset:1024{sc} lds
            s_add_u32 s62, s62, 1
            s_and_b32 s62, s62, 7
            s_add_u32 s69, s69, 16384
            s_cmp_ge_u32 s69, {NS*16384}
            s_cselect_b32 s52, {NS*16384}, 0
            s_sub_u32 s69, s69, s52""")

        self(f"s_lshl_b32 s69, s{S_WAVE}, 11")
        dma()
        dma()
        self(f"""v_mov_b32 v{VIDX}, 0xdddddddd
        v_mov_b32 v{VK}, v{VD}
        v_and_b32 v1, 15, v0
        v_lshlrev_b32 v1, 4, v1
        v_lshrrev_b32 v2, 5, v0
        v_lshl_add_u32 v{VV}, v2, 8, v1
        v_add_u32 v{VV}, 1024, v{VV}
        v_add_u32 v{VKN}, 16384, v{VK}
        v_add_u32 v{VVN}, 16384, v{VV}
        s_mov_b32 s{S_VMASK}, 0x0000ffff
        s_mov_b32 s{S_VMASK+1}, 0x0000ffff
        v_and_b32 v1, 31, v0
        v_cmp_eq_u32 vcc, 16, v1
        v_mov_b32 v2, 0x3f803f80
        s_nop 0
        v_cndmask_b32 v{VB[0]}, 0, v2, vcc""")
        for i in range(1, 16):
            self(f"v_mov_b32 v{VB[0]+i}, v{VB[0]}")
        for i in range(16):
            self(f"v_mov_b32 v{O+i}, 0")
        for i in range(8):
            self(f"v_mov_b32 v{P2+i}, 0")
        self(f"s_waitcnt vmcnt(2)")
        self.signal(VSIG, 1, base + 1)
        self.wait(VPOLL, 1, base + 1)
        self.stamp(5)
        if self.cyc: self.stamp(1, True)
        self(f"""ds_read_b128 v[{KB[0]}:{KB[0]+3}], v{VK}
        ds_read_b128 v[{KB[1]}:{KB[1]+3}], v{VK} offset:2048
        s_mov_b64 exec, s[{S_VMASK}:{S_VMASK+1}]
        ds_read_b128 v[{VB[0]}:{VB[0]+3}], v{VV}
        ds_read_b128 v[{VB[0]+4}:{VB[0]+7}], v{VV} offset:512
        s_mov_b64 exec, -1
        s_waitcnt lgkmcnt(3)
        v_mfma_f32_32x32x16_bf16 v[{S[1]}:{S[1]+15}], v[{KB[0]}:{KB[0]+3}], v[{Q}:{Q+3}], 0
        s_mov_b32 s64, {base+2}
        s_mov_b32 s65, 0
        s_mov_b32 s71, 16384
        s_nop 9""")
        self.rowmax(S[1], NM)
        self(f"s_nop 1\nv_mfma_f32_32x32x16_bf16 v[{S[0]}:{S[0]+15}], v[{KB[0]}:{KB[0]+3}], v[{Q}:{Q+3}], v[{NM}:{NM+15}]\ns_nop 9")
        loop, slow, back, norefill = self.lab("AL"), self.lab("AS"), self.lab("AB"), self.lab("AN")
        self(f".p2align 6\n{loop}:")
        for n in range(8):
            cur, nxt = S[n & 1], S[(n + 1) & 1]
            extra = 1 if n in (2, 4) else 0
            self("s_waitcnt lgkmcnt(2)")
            if n == 5:
                self(f"v_cmp_gt_u32 vcc, s64, v{VT}\ns_cbranch_vccnz {slow}\n{back}:")
            self(f"v_mfma_f32_32x32x16_bf16 v[{nxt}:{nxt+15}], v[{KB[(n+1)&1]}:{KB[(n+1)&1]+3}], v[{Q}:{Q+3}], v[{NM}:{NM+15}]")
            if n + 2 < 8:
                self(f"ds_read_b128 v[{KB[n&1]}:{KB[n&1]+3}], v{VK} offset:{(n+2)*2048}")
            else:
                self(f"ds_read_b128 v[{KB[n&1]}:{KB[n&1]+3}], v{VKN} offset:{(n+2-8)*2048}")
            if n == 2:
                self("s_waitcnt vmcnt(0)")
                self.signal(VSIG, VT, "s64")
            if n == 4:
                self(f"ds_read_b32 v{VT}, v{VPOLL}")
            for i in range(0, 4):
                self(f"v_exp_f32 v{cur+i}, v{cur+i}")
            vb = VB[(n + 1) & 1]
            self(f"v_smfmac_f32_32x32x32_bf16 v[{O}:{O+15}], v[{vb+4}:{vb+7}], v[{P2}:{P2+7}], v{VIDX}")
            va, off = (VV, (n + 1) * 2048) if n + 1 < 8 else (VVN, 0)
            self(f"""s_mov_b64 exec, s[{S_VMASK}:{S_VMASK+1}]
            ds_read_b128 v[{vb}:{vb+3}], v{va} offset:{off}
            ds_read_b128 v[{vb+4}:{vb+7}], v{va} offset:{off+512}
            s_mov_b64 exec, -1""")
            for i in range(4, 8):
                self(f"v_exp_f32 v{cur+i}, v{cur+i}")
            for i in range(8, 10):
                self(f"v_exp_f32 v{P2+i-8}, v{cur+i}")
            vb = VB[n & 1]
            self(f"s_waitcnt lgkmcnt({3+extra})")
            self(f"v_smfmac_f32_32x32x32_bf16 v[{O}:{O+15}], v[{vb}:{vb+3}], v[{cur}:{cur+7}], v{VIDX}")
            if n == 5:
                self(f"s_cmp_gt_u32 s65, 5\ns_cbranch_scc1 {norefill}")
                dma()
                self(f"{norefill}:")
            for i in range(10, 16):
                self(f"v_exp_f32 v{P2+i-8}, v{cur+i}")
            if n == 7:
                self(f"""v_mov_b32 v{VK}, v{VKN}
                v_mov_b32 v{VV}, v{VVN}
                s_add_u32 s53, s71, 16384
                s_cmp_eq_u32 s53, {NS*16384}
                s_cselect_b32 s53, 0, s53
                s_sub_u32 s52, s53, s71
                s_mov_b32 s71, s53
                v_add_u32 v{VKN}, s52, v{VKN}
                v_add_u32 v{VVN}, s52, v{VVN}
                s_add_u32 s64, s64, 1
                s_add_u32 s65, s65, 1
                s_cmp_lt_u32 s65, 8
                s_cbranch_scc1 {loop}""")
        self.stamp(6)
        if self.cyc: self.stamp(2, True)
        self(f"v_smfmac_f32_32x32x32_bf16 v[{O}:{O+15}], v[{VB[1]+4}:{VB[1]+7}], v[{P2}:{P2+7}], v{VIDX}")
        fin, fb = self.lab("AF"), self.lab("AR")
        self(f"""s_nop 11
        v_mov_b32 v1, v{O+8}
        v_mov_b32 v2, {f32(2.0**60)}
        s_movk_i32 s52, 0x207
        v_permlane32_swap_b32 v{O+8}, v1
        s_nop 1
        v_cmp_nle_f32 vcc, v{O+8}, v2""")
        for i in range(8):
            self(f"v_cmp_class_f32 s[54:55], v{O+i}, s52\ns_or_b64 vcc, vcc, s[54:55]")
        self(f"s_cbranch_vccnz {fb}\n{fin}:")
        self(f"""v_rcp_f32 v1, v{O+8}
        s_lshl_b32 s52, s66, 5
        s_add_u32 s52, s52, s60
        s_lshl_b32 s53, s52, 10
        s_add_u32 s53, s53, {WS_O}
        v_mul_f32 v1, v1, v{VGT}""")
        for i in range(8):
            self(f"v_mul_f32 v{O+i}, v{O+i}, v1")
        for i in range(4):
            self(f"v_cvt_pk_bf16_f32 v{Q+i}, v{O+2*i}, v{O+2*i+1}")
        self(f"buffer_store_dwordx4 v[{Q}:{Q+3}], v{VD}, s[{SRD_WS}:{SRD_WS+3}], s53 offen{sc}")
        if self.mega:
            self(f"s_lshl_b32 s52, s52, 7\ns_add_u32 s52, s52, {WS_FO}")
            self.gsignal(52, 1, 2)
        self.end()
        self(f"{slow}:")
        self.wait(VPOLL, VT, "s64")
        self(f"s_branch {back}")
        self(f"{fb}:\ns_waitcnt lgkmcnt(0)\nv_mov_b32 v{VK}, 0xff800000\ns_mov_b32 s65, 0\ns_mov_b32 s52, s63")
        l = self.lab("AR")
        self(f"""{l}:
        buffer_load_dwordx4 v[{KB[0]}:{KB[0]+3}], v{VD}, s[{SRD_WS}:{SRD_WS+3}], s52 offen{sc}
        s_waitcnt vmcnt(0)
        v_mfma_f32_32x32x16_bf16 v[{S[0]}:{S[0]+15}], v[{KB[0]}:{KB[0]+3}], v[{Q}:{Q+3}], 0
        s_nop 15""")
        for i in range(8):
            self(f"v_max3_f32 v{VK}, v{S[0]+2*i}, v{S[0]+2*i+1}, v{VK}")
        self(f"""s_add_u32 s52, s52, 2048
        s_add_u32 s65, s65, 1
        s_cmp_lt_u32 s65, 64
        s_cbranch_scc1 {l}
        v_mov_b32 v1, v{VK}
        s_nop 1
        v_permlane32_swap_b32 v{VK}, v1
        s_nop 1
        v_max_f32 v1, v1, v{VK}""")
        for i in range(16):
            self(f"v_sub_f32 v{NM+i}, 0, v1\nv_mov_b32 v{O+i}, 0")
        self(f"""v_and_b32 v1, 15, v0
        v_lshlrev_b32 v1, 4, v1
        v_lshrrev_b32 v2, 5, v0
        v_lshl_add_u32 v{VV}, v2, 8, v1
        s_mov_b32 s65, 0
        s_mov_b32 s52, s63""")
        l = self.lab("AR")
        self(f"""{l}:
        buffer_load_dwordx4 v[{KB[0]}:{KB[0]+3}], v{VD}, s[{SRD_WS}:{SRD_WS+3}], s52 offen{sc}
        s_mov_b64 exec, s[{S_VMASK}:{S_VMASK+1}]
        buffer_load_dwordx4 v[{VB[0]}:{VB[0]+3}], v{VV}, s[{SRD_WS}:{SRD_WS+3}], s52 offen offset:1024{sc}
        buffer_load_dwordx4 v[{VB[0]+4}:{VB[0]+7}], v{VV}, s[{SRD_WS}:{SRD_WS+3}], s52 offen offset:1536{sc}
        s_mov_b64 exec, -1
        s_waitcnt vmcnt(0)
        v_mfma_f32_32x32x16_bf16 v[{S[0]}:{S[0]+15}], v[{KB[0]}:{KB[0]+3}], v[{Q}:{Q+3}], v[{NM}:{NM+15}]
        s_nop 15""")
        for i in range(16):
            self(f"v_exp_f32 v{S[0]+i}, v{S[0]+i}")
        self(f"""s_nop 1
        v_smfmac_f32_32x32x32_bf16 v[{O}:{O+15}], v[{VB[0]}:{VB[0]+3}], v[{S[0]}:{S[0]+7}], v{VIDX}
        v_smfmac_f32_32x32x32_bf16 v[{O}:{O+15}], v[{VB[0]+4}:{VB[0]+7}], v[{S[0]+8}:{S[0]+15}], v{VIDX}
        s_add_u32 s52, s52, 2048
        s_add_u32 s65, s65, 1
        s_cmp_lt_u32 s65, 64
        s_cbranch_scc1 {l}
        s_nop 15
        v_mov_b32 v1, v{O+8}
        s_nop 1
        v_permlane32_swap_b32 v{O+8}, v1
        s_nop 1
        s_branch {fin}""")

    def rowmax(self, s, nm):
        self(f"v_max3_f32 v1, v{s}, v{s+1}, v{s+2}\nv_max3_f32 v2, v{s+3}, v{s+4}, v{s+5}")
        for i in range(6, 14, 4):
            self(f"v_max3_f32 v1, v{s+i}, v{s+i+1}, v1\nv_max3_f32 v2, v{s+i+2}, v{s+i+3}, v2")
        self(f"""v_max3_f32 v1, v{s+14}, v{s+15}, v1
        v_max_f32 v1, v1, v2
        v_mov_b32 v2, v1
        s_nop 1
        v_permlane32_swap_b32 v1, v2
        s_nop 1
        v_max_f32 v1, v1, v2""")
        for i in range(16):
            self(f"v_sub_f32 v{nm+i}, 0, v1")

    TB = [16, 24]
    FB = 32
    ACC = 88
    VTD, VTR0, VTR1, VFD, VTD2 = 4, 5, 6, 7, 164

    def g_setup(self, pitch, swapped, tbit):
        self(f"""v_lshrrev_b32 v1, 3, v0
        v_and_b32 v2, 7, v0
        v_bfe_u32 v3, v0, 4, 1
        v_lshlrev_b32 v3, 2, v3
        v_xor_b32 v2, v2, v3
        v_mul_u32_u24 v{self.VTD}, {pitch}, v1
        v_lshl_add_u32 v{self.VTD}, v2, 4, v{self.VTD}
        v_add_u32 v{self.VTD2}, {8*pitch-1024}, v{self.VTD}
        v_lshlrev_b32 v{self.VFD}, 4, v0
        v_bfe_u32 v1, v0, 2, 2
        v_lshrrev_b32 v2, 5, v0
        v_lshl_add_u32 v3, v2, {2 if swapped else 3}, v1
        v_lshlrev_b32 v3, 7, v3
        v_lshrrev_b32 v1, 1, v1
        s_bfe_u32 s52, s54, {0x10000 | tbit}
        v_xor_b32 v1, s52, v1
        v_lshl_add_u32 v3, v1, 6, v3
        v_bfe_u32 v1, v0, 4, 1
        v_lshl_add_u32 v3, v1, 5, v3
        v_and_b32 v1, 3, v0
        v_lshl_add_u32 v3, v1, 3, v3
        s_mul_i32 s58, s54, {GRING}
        s_add_u32 s58, s58, {LDS_G}
        v_add_u32 v{self.VTR0}, s58, v3
        v_xor_b32 v{self.VTR1}, 64, v{self.VTR0}""")

    def g_T(self, i, n, srdT, pitch):
        slot = i % R
        return [f"""s_mul_i32 s52, s74, {16*pitch}
        s_add_u32 m0, s58, {slot*2048}
        s_add_u32 s52, s52, s76
        buffer_load_dwordx4 v{self.VTD}, s[{srdT}:{srdT+3}], s52 offen lds""",
        f"""buffer_load_dwordx4 v{self.VTD2}, s[{srdT}:{srdT+3}], s52 offen offset:1024 lds
        s_add_u32 s74, s74, 1
        s_cmp_eq_u32 s74, {n}
        s_cselect_b32 s74, 0, s74"""]

    def g_F(self, i, n):
        f = self.FB + (i % R) * 8
        return [f"""s_lshl_b32 s53, s75, 10
        s_add_u32 s59, s53, s77
        buffer_load_dwordx4 v[{f}:{f+3}], v{self.VFD}, s[{SRD_WS}:{SRD_WS+3}], s59 offen{self.sc}""",
        f"""s_add_u32 s59, s53, s78
        buffer_load_dwordx4 v[{f+4}:{f+7}], v{self.VFD}, s[{SRD_WS}:{SRD_WS+3}], s59 offen{self.sc}
        s_add_u32 s75, s75, 1
        s_cmp_eq_u32 s75, {n}
        s_cselect_b32 s75, 0, s75"""]

    def g_issue_T(self, i, n, srdT, pitch):
        for x in self.g_T(i, n, srdT, pitch):
            self(x)

    def g_reads(self, i, swapped):
        t = self.TB[i & 1]
        o = (i % R) * 2048
        d = 1024 if swapped else 512
        self(f"""ds_read_b64_tr_b16 v[{t}:{t+1}], v{self.VTR0} offset:{o}
        ds_read_b64_tr_b16 v[{t+2}:{t+3}], v{self.VTR0} offset:{o+d}
        ds_read_b64_tr_b16 v[{t+4}:{t+5}], v{self.VTR1} offset:{o}
        ds_read_b64_tr_b16 v[{t+6}:{t+7}], v{self.VTR1} offset:{o+d}""")

    def g_mm(self, i, kind, first, q):
        t = self.TB[i & 1]
        f = self.FB + (i % R) * 8
        a = self.ACC + 16 * q
        c = "0" if first else f"v[{a}:{a+15}]"
        if kind == "g1":
            A, B = t + 4 * (q & 1), f + 4 * (q >> 1)
        elif kind == "g2":
            A, B = f + 4 * (q >> 1), t + 4 * (q & 1)
        else:
            A, B = t + 4 * (q >> 1), f + 4 * (q & 1)
        self(f"v_mfma_f32_32x32x16_bf16 v[{a}:{a+15}], v[{A}:{A+3}], v[{B}:{B+3}], {c}")

    def g_pass(self, n, kind, srdT, pitch, swapped, zero_first, t_pre=0, dist=D):
        order = []

        def wait_for(step):
            last = max(k for k, s in enumerate(order) if s <= step)
            self(f"s_waitcnt vmcnt({min(len(order) - 1 - last, 63)})")

        order += [s for s in range(t_pre) for _ in range(2)]
        for i in range(min(dist, n)):
            for x in ([] if i < t_pre else self.g_T(i, n, srdT, pitch)) + self.g_F(i, n):
                self(x); order.append(i)
        wait_for(0)
        self.g_reads(0, swapped)
        for i in range(n):
            j = i + dist if dist < R else i + dist - 1
            ops = []
            if j < n and j >= dist:
                ops = ([] if j < t_pre else self.g_T(j, n, srdT, pitch)) + self.g_F(j, n)
            z = zero_first and i == 0
            self("s_waitcnt lgkmcnt(0)")
            self.g_mm(i, kind, z, 0)
            if i + 1 < n:
                wait_for(i + 1)
                self.g_reads(i + 1, swapped)
            self.g_mm(i, kind, z, 1)
            for q, k in ((2, 1), (3, 2), (None, 1)):
                for _ in range(k):
                    if ops:
                        self(ops.pop(0)); order.append(j)
                if q is not None:
                    self.g_mm(i, kind, z, q)

    def g_reduce(self, sigval):
        A = self.ACC
        self(f"s_setprio 3\nv_lshl_add_u32 v1, v0, 4, s58\ns_nop 10")
        for t in range(1, 4):
            for k in range(4):
                r = A + 16 * t + 4 * k
                self(f"ds_write_b128 v1, v[{r}:{r+3}] offset:{(t-1)*4096 + k*1024}")
        self.signal(self.VG_SIG, 2, sigval)
        for t in range(1, 4):
            self(f"""s_xor_b32 s52, s54, {t}
            s_mul_i32 s52, s52, {GRING}
            s_add_u32 s52, s52, {LDS_G + (t-1)*4096}
            v_lshl_add_u32 v{7+t}, v0, 4, s52""")
        self.wait(self.VG_POLL, 2, sigval)
        for t in range(1, 4):
            for k in range(4):
                r = A + 16 * t + 4 * k
                self(f"ds_read_b128 v[{r}:{r+3}], v{7+t} offset:{k*1024}")
        self.signal(self.VG_SIG, 2, sigval + 1)
        for t in range(1, 4):
            self(f"s_waitcnt lgkmcnt({(3-t)*4+1})")
            for k in range(16):
                self(f"v_add_f32 v{A+k}, v{A+k}, v{A+16*t+k}")

    def g_start(self):
        if self.gstart == 8:
            self(f"v_and_b32 v1, 3, v0\nv_lshlrev_b32 v1, 2, v1\nv_add_u32 v1, {LDS_SYNC}, v1")
        else:
            self(f"v_mov_b32 v1, {LDS_SYNC + 28}")
        self.wait(1, 2, self.gstart, sleep=True)

    def g1_map(self):
        self(f"""s_sub_u32 s54, s{S_WAVE}, 8
        s_and_b32 s52, s{S_WG}, 7
        s_lshr_b32 s82, s{S_WG}, 3
        s_and_b32 s53, s52, 1
        s_mul_i32 s53, s53, 28
        s_add_u32 s53, s53, s82
        s_lshr_b32 s52, s52, 1
        s_mul_i32 s80, s52, 7
        s_lshr_b32 s52, s53, 3
        s_add_u32 s80, s80, s52
        s_and_b32 s81, s53, 7""")

    def g1_setup(self):
        self.srd(SRD_3, P_W1, 2048 * 3584)
        self.srd(SRD_4, P_B1, 3584)
        self.g_setup(3584, False, 0)
        self(f"""s_lshl2_add_u32 s74, s81, s80
        s_and_b32 s74, s74, 31
        s_mov_b32 s75, s74
        s_mul_i32 s76, s54, {512*3584}
        s_lshl_b32 s52, s80, 7
        s_add_u32 s76, s76, s52
        s_lshr_b32 s52, s54, 1
        s_lshl1_add_u32 s52, s81, s52
        s_lshl_b32 s77, s52, 17
        s_lshl_b32 s53, s54, 15
        s_add_u32 s77, s77, s53
        s_add_u32 s77, s77, {WS_HT}
        s_xor_b32 s78, s77, {1 << 17}""")

    def g1_main(self, sig0):
        A = self.ACC
        t_pre = 0
        if self.mega:
            self.g_start()
            t_pre = D
            for i in range(D):
                self.g_issue_T(i, 32, SRD_3, 3584)
            self(f"""s_lshr_b32 s52, s81, 1
            s_lshl_b32 s52, s52, 10
            s_lshl_b32 s53, s54, 8
            s_add_u32 s52, s52, s53
            s_add_u32 s52, s52, {WS_FH}
            v_lshl_add_u32 v1, v0, 2, s52""")
            self.stamp(2)
            self.gwait(1, 2)
        self.stamp(3)
        self(f"s_setprio {self.gprio}")
        self.g_pass(32, "g1", SRD_3, 3584, False, True, t_pre=t_pre)
        self.stamp(4)
        self(f"""v_lshrrev_b32 v1, 5, v0
        v_lshlrev_b32 v1, 3, v1
        s_and_b32 s53, s54, 1
        s_lshl1_add_u32 s83, s80, s53
        s_lshl_b32 s52, s83, 6""")
        for g in range(4):
            self(f"buffer_load_dwordx2 v[{16+2*g}:{17+2*g}], v1, s[{SRD_4}:{SRD_4+3}], s52 offen offset:{16*g}")
        self.g_reduce(sig0 + 1)
        self("s_waitcnt vmcnt(0)")
        k0 = -2.0 * math.sqrt(2.0 / math.pi) * LOG2E
        k1 = k0 * 0.044715
        self(f"s_mov_b32 s52, {f32(k1)}\nv_mov_b32 v3, {f32(k0)}")
        T = A + 16
        for k in range(16):
            src = 16 + k // 2
            if k & 1:
                self(f"v_and_b32 v{T+k}, 0xffff0000, v{src}")
            else:
                self(f"v_lshlrev_b32 v{T+k}, 16, v{src}")
        for k in range(16):
            self(f"v_add_f32 v{A+k}, v{A+k}, v{T+k}")
        for k in range(16):
            self(f"v_mul_f32 v{T+k}, v{A+k}, v{A+k}")
        for k in range(16):
            self(f"v_fma_f32 v{T+k}, v{T+k}, s52, v3")
        for k in range(16):
            self(f"v_mul_f32 v{T+k}, v{T+k}, v{A+k}")
        for k in range(16):
            self(f"v_exp_f32 v{T+k}, v{T+k}")
        for k in range(16):
            self(f"v_add_f32 v{T+k}, 1.0, v{T+k}")
        for k in range(16):
            self(f"v_rcp_f32 v{T+k}, v{T+k}")
        for k in range(16):
            self(f"v_mul_f32 v{A+k}, v{A+k}, v{T+k}")
        for k in range(8):
            self(f"v_cvt_pk_bf16_f32 v{16+k}, v{A+2*k}, v{A+2*k+1}")
        self(f"""s_lshr_b32 s52, s54, 1
        s_lshl1_add_u32 s52, s81, s52
        s_mul_i32 s53, s52, 112
        s_lshl1_add_u32 s53, s83, s53
        s_lshl_b32 s53, s53, 10
        s_add_u32 s53, s53, {WS_U}
        buffer_store_dwordx4 v[16:19], v{self.VFD}, s[{SRD_WS}:{SRD_WS+3}], s53 offen{self.sc}
        buffer_store_dwordx4 v[20:23], v{self.VFD}, s[{SRD_WS}:{SRD_WS+3}], s53 offen offset:1024{self.sc}""")
        if self.mega:
            self(f"""s_lshr_b32 s52, s54, 1
            s_lshl1_add_u32 s52, s81, s52
            s_lshl_b32 s52, s52, 6
            s_add_u32 s52, s52, s83
            s_lshl_b32 s52, s52, 7
            s_add_u32 s52, s52, {WS_FU}""")
            self.gsignal(52, 1, 2)

    def g23(self, ring_free_val, red_val):
        A = self.ACC
        VG0, VG1, VB2 = 11, 12, 13
        self(f"""s_sub_u32 s54, s{S_WAVE}, 8
        s_and_b32 s52, s{S_WG}, 7
        s_lshr_b32 s82, s{S_WG}, 3
        s_and_b32 s80, s82, 3
        s_lshl2_add_u32 s80, s52, s80
        s_lshr_b32 s81, s82, 2""")
        self.srd(SRD_3, P_W2, 1792 * 4096)
        self.srd(SRD_4, P_WO, 512 * 1024)
        self.srd(SRD_1, P_B2, 4096)
        self.srd(SRD_2, P_OUT, 2048 * 1024)
        self.g_setup(4096, True, 0)
        self(f"""s_cmp_ge_u32 s82, 28
        s_cselect_b32 s52, 28, 0
        s_sub_u32 s74, s82, s52
        s_mov_b32 s75, s74
        s_mul_i32 s76, s54, {28*16*4096}
        s_lshl_b32 s52, s80, 7
        s_add_u32 s76, s76, s52
        s_lshr_b32 s52, s54, 1
        s_lshl1_add_u32 s52, s81, s52
        s_xor_b32 s53, s52, 1
        s_mul_i32 s77, s52, {112*1024}
        s_mul_i32 s78, s53, {112*1024}
        s_mul_i32 s53, s54, {28*1024}
        s_add_u32 s53, s53, {WS_U}
        s_add_u32 s77, s77, s53
        s_add_u32 s78, s78, s53""")
        if ring_free_val:
            self.wait(self.VG_POLL, 2, ring_free_val)
        self(f"s_and_b32 s52, s54, 1\ns_lshl1_add_u32 s83, s80, s52")
        t_pre = 0
        if self.mega:
            t_pre = D
            for i in range(D):
                self.g_issue_T(i, 28, SRD_3, 4096)
            self(f"""v_and_b32 v1, 3, v0
            v_bfe_u32 v2, v0, 2, 3
            v_lshlrev_b32 v1, 10, v1
            v_lshl_add_u32 v1, v2, 2, v1
            s_lshl_b32 s52, s80, 5
            s_add_u32 s52, s52, {WS_FH}
            v_add_u32 v1, s52, v1""")
            self.gwait(1, 2)
        self(f"""v_and_b32 v1, 31, v0
        v_lshlrev_b32 v2, 2, v1
        v_lshlrev_b32 v1, 1, v1
        s_lshl_b32 s52, s83, 7
        s_add_u32 s52, s52, {WS_G}
        s_xor_b32 s53, s52, 128
        buffer_load_dword v{VG0}, v2, s[{SRD_WS}:{SRD_WS+3}], s52 offen{self.sc}
        buffer_load_dword v{VG1}, v2, s[{SRD_WS}:{SRD_WS+3}], s53 offen{self.sc}
        s_lshl_b32 s52, s83, 6
        buffer_load_ushort v{VB2}, v1, s[{SRD_1}:{SRD_1+3}], s52 offen""")
        if self.mega:
            self(f"""s_lshl_b32 s52, s81, 7
            s_mul_i32 s53, s54, 14
            s_add_u32 s52, s52, s53
            s_lshl_b32 s52, s52, 7
            s_add_u32 s52, s52, {WS_FU}
            v_lshrrev_b32 v1, 1, v0
            v_min_u32 v1, 13, v1
            v_and_b32 v2, 1, v0
            v_lshl_add_u32 v1, v2, 6, v1
            v_lshl_add_u32 v1, v1, 7, s52""")
            self("s_setprio 0")
            self.gwait(1, 2, sleep=8)
        self.stamp(5)
        self(f"s_setprio {self.gprio}")
        self.g_pass(28, "g2", SRD_3, 4096, True, True, t_pre=t_pre)
        self.stamp(6)
        self("s_setprio 3")
        self.g_setup(1024, True, 1)
        self(f"""s_and_b32 s74, s82, 7
        s_mov_b32 s75, s74
        s_lshl_b32 s76, s54, 17
        s_lshl_b32 s52, s81, 7
        s_add_u32 s76, s76, s52
        s_lshl_b32 s77, s83, 15
        s_lshl_b32 s53, s54, 13
        s_add_u32 s77, s77, s53
        s_add_u32 s77, s77, {WS_O}
        s_xor_b32 s78, s77, {1 << 15}""")
        for i in range(R):
            self.g_issue_T(i, 8, SRD_4, 1024)
        self(f"v_sub_f32 v{VG0}, 1.0, v{VG0}\nv_sub_f32 v{VG1}, 1.0, v{VG1}\nv_lshlrev_b32 v{VB2}, 16, v{VB2}")
        for q in range(4):
            for k in range(16):
                self(f"v_mul_f32 v{A+16*q+k}, v{A+16*q+k}, v{VG1 if q & 1 else VG0}")
        for k in range(16):
            self(f"v_fmac_f32 v{A+k}, v{VB2}, v{VG0}")
        if self.mega:
            self(f"""s_lshl_b32 s52, s80, 6
            s_lshl3_add_u32 s52, s54, s52
            s_lshl_b32 s52, s52, 7
            s_add_u32 s52, s52, {WS_FO}
            v_bfe_u32 v1, v0, 1, 3
            v_and_b32 v2, 1, v0
            v_lshl_add_u32 v1, v2, 5, v1
            v_lshl_add_u32 v1, v1, 7, s52
            s_setprio 0""")
            self.gwait(1, 2, sleep=4)
            self("s_setprio 3")
        self.stamp(7)
        self.g_pass(8, "op", SRD_4, 1024, True, False, t_pre=R, dist=R)
        self.g_reduce(red_val)
        for k in range(8):
            self(f"v_cvt_pk_bf16_f32 v{16+k}, v{A+2*k}, v{A+2*k+1}")
        self(f"""v_and_b32 v1, 31, v0
        v_lshlrev_b32 v1, 10, v1
        v_lshrrev_b32 v2, 5, v0
        v_lshl_add_u32 v1, v2, 4, v1
        s_lshr_b32 s52, s54, 1
        s_lshl1_add_u32 s52, s81, s52
        s_lshl_b32 s52, s52, 6
        s_lshl_b32 s53, s83, 15
        s_add_u32 s52, s52, s53
        v_permlane32_swap_b32 v16, v18
        v_permlane32_swap_b32 v17, v19
        v_permlane32_swap_b32 v20, v22
        v_permlane32_swap_b32 v21, v23
        s_nop 1
        buffer_store_dwordx4 v[16:19], v1, s[{SRD_2}:{SRD_2+3}], s52 offen
        buffer_store_dwordx4 v[20:23], v1, s[{SRD_2}:{SRD_2+3}], s52 offen offset:32""")
        if self.mega:
            l = self.lab("EP")
            self(f"""s_lshl4_add_u32 s52, s{S_WG}, s54
            s_cmp_lg_u32 s52, 0
            s_cbranch_scc1 {l}
            s_mov_b32 s52, {WS_EPOCH}""")
            self.gsignal(52, 1, 2)
            self(f"{l}:")


def descriptor(label, nv):
    return f""".amdhsa_kernel {label}
  .amdhsa_next_free_vgpr {nv}
  .amdhsa_next_free_sgpr 102
  .amdhsa_accum_offset {nv}
  .amdhsa_group_segment_fixed_size 0
  .amdhsa_kernarg_size 96
  .amdhsa_user_sgpr_count 2
  .amdhsa_user_sgpr_kernarg_segment_ptr 1
  .amdhsa_system_sgpr_workgroup_id_x 1
.end_amdhsa_kernel
"""


HEAD = open("cdna_kernels/" + NAME + ".s.ref").read().split("; Override launch")[0]


def build_multi(extra_empty=0, prof=False, opts={}):
    g = Gen(False, prof)
    g.__dict__.update(opts)
    launches = [("k1_kernel", 768), ("k2_kernel", 768), ("k3_kernel", 256)]
    g.prologue("k1_kernel", 0, "K1_exit")
    g(f"s_cmp_ge_u32 s{S_WAVE}, 8\ns_cbranch_scc1 K1_g\ns_cmp_ge_u32 s{S_WAVE}, 4\ns_cbranch_scc1 K1_l")
    g.qkv_compute()
    g.end()
    g("K1_exit:\ns_endpgm\nK1_l:")
    g.qkv_loader()
    g.end()
    g("K1_g:")
    g.ln_issue()
    g.sync_regs(g.VG_SIG, g.VG_POLL, 8, 4)
    g.ln(0)
    g.end()
    g.kid = 1
    g.prologue("k2_kernel", 0, "K2_exit")
    g(f"s_cmp_ge_u32 s{S_WAVE}, 8\ns_cbranch_scc1 K2_g")
    g.attention()
    g("K2_g:")
    g.sync_regs(g.VG_SIG, g.VG_POLL, 8, 4)
    g.g1_map()
    g("s_cmp_ge_u32 s82, 28\ns_cbranch_scc1 K2_exit")
    g.g1_setup()
    g.g1_main(0)
    g.end()
    g("K2_exit:\ns_endpgm")
    g.kid = 2
    g.prologue("k3_kernel", 8, "K3_exit")
    g.sync_regs(g.VG_SIG, g.VG_POLL, 8, 4)
    g.g23(0, 1)
    g.end()
    g("K3_exit:\ns_endpgm")
    kernels = [k for k, _ in launches]
    if extra_empty:
        g(".p2align 8\n.type k0_kernel,@function\nk0_kernel:\ns_endpgm")
        launches += [("k0_kernel", 64)] * extra_empty
        kernels.append("k0_kernel")
    out = HEAD
    for k, b in launches:
        out += f"; @launch kernel={k} grid=(256,1,1) block=({b},1,1) lds={LDS_TOTAL if k != 'k0_kernel' else 0}\n"
    out += '.amdgcn_target "amdgcn-amd-amdhsa--gfx950"\n.text\n'
    out += "\n".join(g.L) + '\n.section .rodata,"a"\n'
    for k in kernels:
        out += ".p2align 6\n" + descriptor(k, 168)
    return out


def build_mega(prof=False, opts={}):
    g = Gen(True, prof)
    g.__dict__.update(opts)
    k = NAME + "_kernel"
    g(f".globl {k}")
    g.prologue(k, 0, "M_exit")
    g(f"s_cmp_ge_u32 s{S_WAVE}, 8\ns_cbranch_scc1 M_g\ns_cmp_ge_u32 s{S_WAVE}, 4\ns_cbranch_scc1 M_l")
    g.qkv_compute()
    g("s_branch M_attn\nM_l:")
    g.qkv_loader()
    g("M_attn:")
    g.attention()
    g("M_g:")
    g.ln_issue()
    g.sync_regs(g.VG_SIG, g.VG_POLL, 8, 4)
    g.ln(0)
    g.g1_map()
    g("s_cmp_ge_u32 s82, 28\ns_cbranch_scc1 M_nog1")
    g.g1_setup()
    g.g1_main(2)
    g("s_branch M_g2\nM_nog1:")
    g.g_start()
    g.signal(g.VG_SIG, 2, 4)
    g("M_g2:")
    g.g23(4, 5)
    g.end()
    g("M_exit:\ns_endpgm")
    out = HEAD + f"; @launch grid=(256,1,1) block=(768,1,1) lds={LDS_TOTAL}\n"
    out += '.amdgcn_target "amdgcn-amd-amdhsa--gfx950"\n.text\n'
    out += "\n".join(g.L) + '\n.section .rodata,"a"\n.p2align 6\n' + descriptor(k, 168)
    return out


if __name__ == "__main__":
    mode = sys.argv[1]
    path = sys.argv[2]
    prof = "--prof" in sys.argv
    opts = {a.split("=")[0]: int(a.split("=")[1]) for a in sys.argv[3:] if "=" in a}
    if mode == "multi":
        s = build_multi(opts.pop("empty", 0), prof, opts)
    else:
        s = build_mega(prof, opts)
    open(path, "w").write(s)
```

```python
import sys, math

NAME = "gated_mix__softmax_full_mha__mixer_token_mlp__prompt"

WS_Q = 0x000000
WS_KV = 0x200000
WS_HT = 0x600000
WS_U = 0x800000
WS_O = 0xA00000
WS_G = 0xC00000
WS_FH = 0xD00000
WS_EPOCH = 0xD05000
WS_FQ = 0xD20000
WS_FU = 0xD40000
WS_FO = 0xD80000
WS_STAMP = 0xE00000
WS_SIZE = 0x1000000

LDS_A = 0
LDS_G = 49152
LDS_LN = 131072
LNP = 1088
GRING = 14336
R = 7
D = 6
LDS_SYNC = LDS_LN + 8 * LNP
LDS_TOTAL = LDS_SYNC + 64
OOB = 0x40000

S_WG, S_WAVE = 2, 3
SRD_WS, SRD_1, SRD_2, SRD_3, SRD_4 = 4, 8, 12, 40, 44
P_X, P_WQKV, P_WO, P_W1, P_B1, P_W2, P_B2, P_GW, P_OUT, P_DBG, P_WS = 16, 18, 20, 24, 26, 28, 30, 32, 34, 36, 38
S_SPIN, S_TAG = 48, 49
S_VMASK = 50

LOG2E = 1.4426950408889634


def f32(x):
    import struct
    return "0x%08x" % struct.unpack("<I", struct.pack("<f", x))[0]


class Gen:
    def __init__(self, mega, prof=False):
        self.L = []
        self.prof = prof
        self.kid = 0
        self.mega = mega
        self.nlab = 0
        self.sc = " sc1" if mega else ""
        self.gprio = 0
        self.tlb = 0
        self.qrot = 1
        self.scramble = 0
        self.cyc = False
        self.gstart = 8
        self.qfl = 3

    def __call__(self, s):
        for line in s.split("\n"):
            line = line.strip()
            if line:
                self.L.append("    " + line if not line.endswith(":") else line)

    def stamp(self, k, cyc=False):
        if self.prof:
            self(f"{'s_memtime' if cyc else 's_memrealtime'} s[{84+2*k}:{85+2*k}]")

    def end(self):
        if self.prof:
            self("s_waitcnt lgkmcnt(0)\nv_mov_b32 v1, 0")
            self(f"s_memrealtime s[100:101]\ns_waitcnt vmcnt(0) lgkmcnt(0)")
            for k in range(9):
                self(f"v_writelane_b32 v1, s{84+2*k}, {k}")
            self(f"""s_mul_i32 s52, s{S_WG}, 12
            s_add_u32 s52, s52, s{S_WAVE}
            s_lshl_b32 s52, s52, 6
            s_add_u32 s52, s52, {WS_STAMP + self.kid * 0x40000}
            v_lshlrev_b32 v2, 2, v0
            v_cmp_gt_u32 vcc, 16, v0
            s_and_saveexec_b64 s[54:55], vcc
            buffer_store_dword v1, v2, s[{SRD_WS}:{SRD_WS+3}], s52 offen""")
        self("s_endpgm")

    def lab(self, base="L"):
        self.nlab += 1
        return f"{base}_{self.nlab}"

    def srd(self, s, p, nbytes):
        self(f"s_mov_b32 s{s}, s{p}\ns_mov_b32 s{s+1}, s{p+1}\ns_mov_b32 s{s+2}, {nbytes}\ns_mov_b32 s{s+3}, 0x00020000")

    def signal(self, vsig, vtmp, val):
        self(f"v_mov_b32 v{vtmp}, {val}\nds_write_b32 v{vsig}, v{vtmp}")

    def wait(self, vpoll, vtmp, val, sleep=False):
        l0, l1 = self.lab("W"), self.lab("W")
        self(f"""{l0}:
        ds_read_b32 v{vtmp}, v{vpoll}
        s_waitcnt lgkmcnt(0)
        v_cmp_gt_u32 vcc, {val}, v{vtmp}
        s_cbranch_vccz {l1}
        {"s_sleep 2" if sleep else ""}
        s_sub_u32 s{S_SPIN}, s{S_SPIN}, 1
        s_cbranch_scc0 {l0}
        s_mov_b32 s{S_SPIN}, 0
        {l1}:""")

    def gwait(self, vaddr, vtmp, sleep=4):
        if not self.mega:
            return
        l0, l1 = self.lab("GW"), self.lab("GW")
        self(f"""{l0}:
        buffer_load_dword v{vtmp}, v{vaddr}, s[{SRD_WS}:{SRD_WS+3}], 0 offen sc1
        s_waitcnt vmcnt(0)
        v_cmp_ne_u32 vcc, s{S_TAG}, v{vtmp}
        s_cbranch_vccz {l1}
        s_sleep {sleep}
        s_sub_u32 s{S_SPIN}, s{S_SPIN}, 1
        s_cbranch_scc0 {l0}
        s_mov_b32 s{S_SPIN}, 0
        {l1}:""")

    def gsignal(self, soff, vtmp, vtmp2):
        if not self.mega:
            return
        self(f"""v_mov_b32 v{vtmp}, s{S_TAG}
        v_cmp_eq_u32 vcc, 0, v0
        v_mov_b32 v{vtmp2}, 0x7ffffff0
        s_nop 0
        v_cndmask_b32 v{vtmp2}, v{vtmp2}, 0, vcc
        s_waitcnt vmcnt(0)
        buffer_store_dword v{vtmp}, v{vtmp2}, s[{SRD_WS}:{SRD_WS+3}], s{soff} offen sc1""")

    def prologue(self, label, wave_off, exit_label):
        self(f""".p2align 8
        .type {label},@function
        {label}:
        s_cmp_ge_u32 s2, 256
        s_cbranch_scc1 {exit_label}""")
        if self.prof:
            for k in range(84, 102):
                self(f"s_mov_b32 s{k}, 0")
        self.stamp(0)
        if self.scramble == 2:
            self("s_lshr_b32 s52, s2, 3\ns_and_b32 s53, s52, 7\ns_xor_b32 s2, s2, s53\ns_lshr_b32 s52, s52, 3\ns_lshl_b32 s52, s52, 1\ns_xor_b32 s2, s2, s52")
        if self.scramble == 1:
            self("s_lshr_b32 s52, s2, 5\ns_and_b32 s2, s2, 31\ns_lshl_b32 s2, s2, 3\ns_or_b32 s2, s2, s52")
        self(f"""s_load_dwordx16 s[16:31], s[0:1], 0
        s_load_dwordx8 s[32:39], s[0:1], 64
        v_lshrrev_b32 v1, 6, v0
        v_and_b32 v0, 63, v0
        s_mov_b32 s{S_SPIN}, 0x40000
        v_readfirstlane_b32 s{S_WAVE}, v1
        v_lshlrev_b32 v2, 2, v0
        v_add_u32 v2, {LDS_SYNC}, v2
        v_mov_b32 v3, 0""")
        if wave_off:
            self(f"s_add_u32 s{S_WAVE}, s{S_WAVE}, {wave_off}")
        l = self.lab("P")
        self(f"""s_cmp_lg_u32 s{S_WAVE}, 8
        s_cbranch_scc1 {l}
        ds_write_b32 v2, v3
        {l}:
        s_waitcnt lgkmcnt(0)""")
        if self.mega:
            self(f"""s_add_u32 s52, s{P_WS}, {WS_EPOCH}
            s_addc_u32 s53, s{P_WS+1}, 0
            s_load_dword s{S_TAG}, s[52:53], 0""")
        self("s_barrier")
        self.srd(SRD_WS, P_WS, WS_SIZE)

    def get_tag(self):
        if self.mega:
            self(f"s_waitcnt lgkmcnt(0)\ns_add_u32 s{S_TAG}, s{S_TAG}, 0x9E3779B9")

    def sync_regs(self, vsig, vpoll, first, count):
        self(f"""s_lshl_b32 s52, s{S_WAVE}, 2
        s_add_u32 s52, s52, {LDS_SYNC}
        v_mov_b32 v{vsig}, {OOB}
        v_mov_b32 v{vpoll}, s52
        v_cmp_eq_u32 vcc, 0, v0
        s_nop 1
        v_cndmask_b32 v{vsig}, v{vsig}, v{vpoll}, vcc
        v_and_b32 v{vpoll}, {count-1}, v0
        v_lshlrev_b32 v{vpoll}, 2, v{vpoll}
        v_add_u32 v{vpoll}, {LDS_SYNC + 4*first}, v{vpoll}""")

    def allreduce(self, regs, tmps, op="v_add_f32"):
        for sh in (1, 2, 4, 8):
            for r in regs:
                self(f"{op}_dpp v{r}, v{r}, v{r} row_ror:{sh} row_mask:0xf bank_mask:0xf")
            if len(regs) < 3:
                self("s_nop 1")
        for sw in ("v_permlane16_swap_b32", "v_permlane32_swap_b32"):
            for r, t in zip(regs, tmps):
                self(f"v_mov_b32 v{t}, v{r}")
            self("s_nop 1")
            for r, t in zip(regs, tmps):
                self(f"{sw} v{r}, v{t}")
            self("s_nop 1")
            for r, t in zip(regs, tmps):
                self(f"{op} v{r}, v{r}, v{t}")
            self("s_nop 1")

    VG_SIG, VG_POLL = 14, 15

    def ln_issue(self):
        self.srd(SRD_1, P_X, 2048 * 1024)
        self.srd(SRD_2, P_GW, 1024)
        self(f"""s_sub_u32 s54, s{S_WAVE}, 8
        s_and_b32 s79, s{S_WG}, 7
        s_lshl_b32 s79, s79, 5
        s_lshr_b32 s55, s{S_WG}, 3
        s_add_u32 s79, s79, s55
        s_lshl_b32 s55, s79, 3
        s_lshl1_add_u32 s55, s54, s55
        s_lshl_b32 s56, s55, 10
        v_lshlrev_b32 v1, 4, v0
        buffer_load_dwordx4 v[152:155], v1, s[{SRD_1}:{SRD_1+3}], s56 offen
        buffer_load_dwordx4 v[156:159], v1, s[{SRD_1}:{SRD_1+3}], s56 offen offset:1024
        buffer_load_dwordx4 v[160:163], v1, s[{SRD_2}:{SRD_2+3}], 0 offen""")

    def touch(self):
        l = [self.lab("T") for _ in range(4)]
        self(f"s_cmp_eq_u32 s54, 0\ns_cbranch_scc1 {l[0]}\ns_cmp_eq_u32 s54, 1\ns_cbranch_scc1 {l[1]}\ns_cmp_eq_u32 s54, 2\ns_cbranch_scc1 {l[2]}")
        self.srd(SRD_3, P_OUT, 2048 * 1024)
        self(f"s_branch {l[3]}\n{l[0]}:")
        self.srd(SRD_3, P_W1, 2048 * 3584)
        self(f"s_branch {l[3]}\n{l[1]}:")
        self.srd(SRD_3, P_W2, 1792 * 4096)
        self(f"s_branch {l[3]}\n{l[2]}:")
        self.srd(SRD_3, P_WO, 512 * 1024)
        self(f"""{l[3]}:
        v_lshlrev_b32 v2, 16, v0
        s_lshl_b32 s56, s54, 22
        s_mov_b32 s57, 0x400000
        buffer_load_dword v165, v2, s[{SRD_WS}:{SRD_WS+3}], s56 offen
        buffer_load_dword v166, v2, s[{SRD_3}:{SRD_3+3}], 0 offen
        buffer_load_dword v167, v2, s[{SRD_3}:{SRD_3+3}], s57 offen""")

    def ln(self, vm_after):
        X0, X1, GW, T = 88, 96, 104, 112
        self.get_tag()
        self(f"s_waitcnt vmcnt({vm_after})")
        self.stamp(1)
        for (src, dst) in ((152, X0), (156, X1), (160, GW)):
            for i in range(4):
                self(f"v_lshlrev_b32 v{dst+2*i}, 16, v{src+i}\nv_and_b32 v{dst+2*i+1}, 0xffff0000, v{src+i}")
        s0, s1, d0, d1 = T, T + 1, T + 2, T + 3
        self(f"v_add_f32 v{s0}, v{X0}, v{X0+1}\nv_add_f32 v{s1}, v{X1}, v{X1+1}")
        self(f"v_mul_f32 v{d0}, v{X0}, v{GW}\nv_mul_f32 v{d1}, v{X1}, v{GW}")
        for i in range(2, 8):
            self(f"v_add_f32 v{s0}, v{s0}, v{X0+i}\nv_add_f32 v{s1}, v{s1}, v{X1+i}")
        for i in range(1, 8):
            self(f"v_fmac_f32 v{d0}, v{X0+i}, v{GW+i}\nv_fmac_f32 v{d1}, v{X1+i}, v{GW+i}")
        self("s_nop 1")
        self.allreduce([s0, s1, d0, d1], [T + 4, T + 5, T + 6, T + 7])
        self(f"v_mul_f32 v{s0}, {f32(1/512)}, v{s0}\nv_mul_f32 v{s1}, {f32(1/512)}, v{s1}")
        for i in range(8):
            self(f"v_sub_f32 v{X0+i}, v{X0+i}, v{s0}\nv_sub_f32 v{X1+i}, v{X1+i}, v{s1}")
        self(f"v_mul_f32 v{s0}, v{X0}, v{X0}\nv_mul_f32 v{s1}, v{X1}, v{X1}")
        for i in range(1, 8):
            self(f"v_fmac_f32 v{s0}, v{X0+i}, v{X0+i}\nv_fmac_f32 v{s1}, v{X1+i}, v{X1+i}")
        self("s_nop 1")
        self.allreduce([s0, s1], [T + 4, T + 5])
        self(f"""v_mov_b32 v{T+4}, {f32(1e-5)}
        v_fmac_f32 v{T+4}, {f32(1/512)}, v{s0}
        v_mov_b32 v{T+5}, {f32(1e-5)}
        v_fmac_f32 v{T+5}, {f32(1/512)}, v{s1}
        v_rsq_f32 v{s0}, v{T+4}
        v_rsq_f32 v{s1}, v{T+5}
        v_cmp_eq_u32 vcc, 0, v0
        v_mul_f32 v{d0}, {f32(-LOG2E)}, v{d0}
        v_mul_f32 v{d1}, {f32(-LOG2E)}, v{d1}
        v_cndmask_b32 v{d0}, v{d1}, v{d0}, vcc
        v_exp_f32 v{d0}, v{d0}""")
        for i in range(8):
            self(f"v_mul_f32 v{X0+i}, v{X0+i}, v{s0}\nv_mul_f32 v{X1+i}, v{X1+i}, v{s1}")
        self(f"v_add_f32 v{d0}, 1.0, v{d0}\nv_rcp_f32 v{d0}, v{d0}")
        for i in range(4):
            self(f"v_cvt_pk_bf16_f32 v{152+i}, v{X0+2*i}, v{X0+2*i+1}\nv_cvt_pk_bf16_f32 v{156+i}, v{X1+2*i}, v{X1+2*i+1}")
        self(f"""s_mul_i32 s56, s54, {2*LNP}
        s_add_u32 s56, s56, {LDS_LN}
        v_lshl_add_u32 v1, v0, 4, s56
        ds_write_b128 v1, v[152:155]
        ds_write_b128 v1, v[156:159] offset:{LNP}
        v_lshlrev_b32 v2, 2, v0
        v_cmp_gt_u32 vcc, 2, v0
        v_mov_b32 v3, 0x7ffffff0
        s_lshl_b32 s56, s55, 2
        v_cndmask_b32 v2, v3, v2, vcc
        s_add_u32 s56, s56, {WS_G}
        buffer_store_dword v{d0}, v2, s[{SRD_WS}:{SRD_WS+3}], s56 offen{self.sc}""")
        self.signal(self.VG_SIG, 3, 1)
        self(f"""v_bfe_u32 v1, v0, 2, 2
        v_mul_u32_u24 v1, {LNP}, v1
        v_lshrrev_b32 v2, 4, v0
        v_lshl_add_u32 v1, v2, 5, v1
        v_and_b32 v2, 3, v0
        v_lshl_add_u32 v1, v2, 3, v1
        s_lshl_b32 s56, s54, 8
        s_add_u32 s56, s56, {LDS_LN}
        v_add_u32 v1, s56, v1""")
        self.wait(self.VG_POLL, 3, 1)
        self(f"""ds_read_b64_tr_b16 v[152:153], v1
        ds_read_b64_tr_b16 v[154:155], v1 offset:{4*LNP}
        ds_read_b64_tr_b16 v[156:157], v1 offset:128
        ds_read_b64_tr_b16 v[158:159], v1 offset:{4*LNP+128}""")
        self(f"""v_lshrrev_b32 v1, 5, v0
        v_lshlrev_b32 v1, 17, v1
        v_and_b32 v2, 31, v0
        v_lshl_add_u32 v1, v2, 4, v1
        s_lshl_b32 s56, s54, 19
        s_lshr_b32 s57, s79, 1
        s_lshl_b32 s57, s57, 10
        s_add_u32 s56, s56, s57
        s_and_b32 s57, s79, 1
        s_lshl_b32 s57, s57, 9
        s_add_u32 s56, s56, s57
        s_add_u32 s56, s56, {WS_HT}
        s_add_u32 s57, s56, {2*128*1024}
        s_waitcnt lgkmcnt(0)
        buffer_store_dwordx4 v[152:155], v1, s[{SRD_WS}:{SRD_WS+3}], s56 offen{self.sc}
        buffer_store_dwordx4 v[156:159], v1, s[{SRD_WS}:{SRD_WS+3}], s57 offen{self.sc}""")
        if self.mega:
            self(f"""s_lshl_b32 s56, s54, 10
            s_lshl2_add_u32 s56, s79, s56
            s_add_u32 s56, s56, {WS_FH}""")
            self.gsignal(56, 2, 3)

    def qkv_map(self):
        self(f"""s_and_b32 s52, s{S_WG}, 7
        s_lshr_b32 s53, s{S_WG}, 3
        s_lshr_b32 s60, s52, 1
        s_lshl_b32 s60, s60, 3
        s_and_b32 s54, s53, 7
        s_add_u32 s60, s60, s54
        s_and_b32 s61, s52, 1
        s_lshl_b32 s61, s61, 2
        s_lshr_b32 s54, s53, 3
        s_add_u32 s61, s61, s54
        s_lshl1_add_u32 s62, s54, s53
        s_add_u32 s62, s62, s52
        s_and_b32 s62, s62, 7""")

    VA_SIG, VA_POLL, VA_POLL2 = 104, 105, 106

    def qkv_loader(self):
        self.srd(SRD_1, P_X, 2048 * 1024)
        self.srd(SRD_2, P_WQKV, 512 * 3072)
        self.qkv_map()
        self(f"""s_sub_u32 s71, s{S_WAVE}, 4
        v_lshrrev_b32 v1, 3, v0
        v_and_b32 v2, 7, v0
        v_lshrrev_b32 v3, 4, v0
        v_xor_b32 v4, v2, v3
        v_xor_b32 v5, 4, v4
        v_lshlrev_b32 v4, 4, v4
        v_lshl_add_u32 v4, v1, 10, v4
        v_lshlrev_b32 v5, 4, v5
        v_lshl_add_u32 v5, v1, 10, v5
        v_add_u32 v5, {8192-1024}, v5
        v_and_b32 v3, 1, v3
        v_lshlrev_b32 v3, 2, v3
        v_xor_b32 v2, v2, v3
        v_mul_u32_u24 v6, 3072, v1
        v_lshl_add_u32 v6, v2, 4, v6
        v_add_u32 v7, {8*3072-1024}, v6
        s_lshl_b32 s66, s60, 16
        s_lshl_b32 s52, s71, 14
        s_add_u32 s66, s66, s52
        s_mul_i32 s68, s71, {16*3072}
        s_lshl_b32 s52, s61, 7
        s_add_u32 s68, s68, s52
        s_lshl_b32 s67, s71, 11
        s_mul_i32 s69, s71, 6144
        s_add_u32 s69, s69, 8192
        s_mov_b32 s72, 0""")
        if self.qrot:
            self(f"""s_lshl_b32 s52, s62, 7
            s_add_u32 s66, s66, s52
            s_mul_i32 s52, s62, {64*3072}
            s_add_u32 s68, s68, s52""")

        def issue():
            if self.qrot:
                l = self.lab("QW")
                self(f"""s_cmp_lg_u32 s62, 8
                s_cbranch_scc1 {l}
                s_sub_u32 s66, s66, 1024
                s_sub_u32 s68, s68, {512*3072}
                {l}:
                s_add_u32 s62, s62, 1""")
            self(f"""s_mov_b32 m0, s67
            s_add_u32 s67, s67, 32768
            buffer_load_dwordx4 v4, s[{SRD_1}:{SRD_1+3}], s66 offen lds
            buffer_load_dwordx4 v5, s[{SRD_1}:{SRD_1+3}], s66 offen offset:1024 lds
            s_mov_b32 m0, s69
            s_add_u32 s66, s66, 128
            buffer_load_dwordx4 v6, s[{SRD_2}:{SRD_2+3}], s68 offen lds
            buffer_load_dwordx4 v7, s[{SRD_2}:{SRD_2+3}], s68 offen offset:1024 lds
            s_add_u32 m0, s69, 1024
            s_and_b32 s67, s67, 0x1ffff
            buffer_load_dwordx4 v6, s[{SRD_2}:{SRD_2+3}], s68 offen offset:1024 lds
            buffer_load_dwordx4 v7, s[{SRD_2}:{SRD_2+3}], s68 offen offset:2048 lds
            s_add_u32 m0, s69, 2048
            s_add_u32 s69, s69, 32768
            buffer_load_dwordx4 v6, s[{SRD_2}:{SRD_2+3}], s68 offen offset:2048 lds
            buffer_load_dwordx4 v7, s[{SRD_2}:{SRD_2+3}], s68 offen offset:3072 lds
            s_and_b32 s69, s69, 0x1ffff
            s_add_u32 s68, s68, {64*3072}
            s_add_u32 s72, s72, 1""")

        for _ in range(self.qfl - 1):
            issue()
        self.sync_regs(self.VA_SIG, self.VA_POLL, 0, 4)
        self.get_tag()
        lp, nw = self.lab("QL"), self.lab("QN")
        self(f"{lp}:\ns_cmp_lt_u32 s72, 4\ns_cbranch_scc1 {nw}\ns_sub_u32 s73, s72, 3")
        self.wait(self.VA_POLL, 1, "s73")
        self(f"{nw}:\ns_sub_u32 s73, s72, {self.qfl - 2}")
        issue()
        self(f"s_waitcnt vmcnt({8 * (self.qfl - 1)})")
        self.signal(self.VA_SIG, 1, "s73")
        self(f"s_cmp_lt_u32 s72, 8\ns_cbranch_scc1 {lp}")
        for k in range(self.qfl - 2, -1, -1):
            self(f"s_waitcnt vmcnt({8 * k})")
            self.signal(self.VA_SIG, 1, 8 - k)

    def qkv_compute(self):
        XA, WA = 4, 8
        FR = [12, 28, 108, 124]
        AQ, AK, AV = 44, 60, 76
        self.qkv_map()
        self(f"""s_and_b32 s64, s{S_WAVE}, 1
        s_lshr_b32 s65, s{S_WAVE}, 1
        v_and_b32 v1, 31, v0
        v_lshrrev_b32 v2, 5, v0
        v_bfe_u32 v3, v0, 1, 3
        v_xor_b32 v3, v3, v2
        v_lshlrev_b32 v3, 4, v3
        v_lshl_add_u32 v{XA}, v1, 7, v3
        s_lshl_b32 s52, s64, 12
        v_add_u32 v{XA}, s52, v{XA}
        v_xor_b32 v{XA+1}, 32, v{XA}
        v_xor_b32 v{XA+2}, 64, v{XA}
        v_xor_b32 v{XA+3}, 96, v{XA}
        v_bfe_u32 v1, v0, 2, 2
        v_lshl_add_u32 v3, v2, 3, v1
        v_lshlrev_b32 v{WA}, 7, v3
        v_lshrrev_b32 v1, 1, v1
        v_xor_b32 v1, s65, v1
        v_lshl_add_u32 v{WA}, v1, 6, v{WA}
        v_bfe_u32 v1, v0, 4, 1
        v_lshl_add_u32 v{WA}, v1, 5, v{WA}
        v_and_b32 v1, 3, v0
        v_lshl_add_u32 v{WA}, v1, 3, v{WA}
        v_add_u32 v{WA}, 8192, v{WA}""")
        for i in range(48):
            self(f"v_mov_b32 v{AQ+i}, 0")
        self.sync_regs(self.VA_SIG, self.VA_POLL, 4, 4)
        self.get_tag()

        def reads(j, b):
            f = FR[b]
            self(f"ds_read_b128 v[{f}:{f+3}], v{XA+j}")
            for p in range(3):
                o = (j * 3 + p) * 2048
                self(f"ds_read_b64_tr_b16 v[{f+4+4*p}:{f+5+4*p}], v{WA} offset:{o}")
                self(f"ds_read_b64_tr_b16 v[{f+6+4*p}:{f+7+4*p}], v{WA} offset:{o+512}")

        def mm(b):
            f = FR[b]
            self(f"""v_mfma_f32_32x32x16_bf16 v[{AQ}:{AQ+15}], v[{f+4}:{f+7}], v[{f}:{f+3}], v[{AQ}:{AQ+15}]
            v_mfma_f32_32x32x16_bf16 v[{AK}:{AK+15}], v[{f+8}:{f+11}], v[{f}:{f+3}], v[{AK}:{AK+15}]
            v_mfma_f32_32x32x16_bf16 v[{AV}:{AV+15}], v[{f}:{f+3}], v[{f+12}:{f+15}], v[{AV}:{AV+15}]""")

        self("s_mov_b32 s72, 1")
        self.wait(self.VA_POLL, 1, 1)
        self.stamp(1)
        reads(0, 0)
        reads(1, 1)
        l, slow, back, lend = self.lab("QC"), self.lab("QC"), self.lab("QC"), self.lab("QC")
        self(f"{l}:")
        reads(2, 2)
        self("s_waitcnt lgkmcnt(14)")
        mm(0)
        reads(3, 3)
        self("s_waitcnt lgkmcnt(14)")
        mm(1)
        self.signal(self.VA_SIG, 1, "s72")
        self(f"""ds_read_b32 v2, v{self.VA_POLL}
        s_mov_b32 s52, 32768
        s_cmp_eq_u32 s72, 4
        s_cselect_b32 s52, {(-98304) & 0xffffffff}, s52
        s_add_u32 s72, s72, 1
        s_min_u32 s63, s72, 8""")
        for r in (XA, XA + 1, XA + 2, XA + 3, WA):
            self(f"v_add_u32 v{r}, s52, v{r}")
        self(f"s_waitcnt lgkmcnt(0)\nv_cmp_gt_u32 vcc, s63, v2\ns_cbranch_vccnz {slow}\n{back}:")
        reads(0, 0)
        mm(2)
        reads(1, 1)
        mm(3)
        self(f"s_cmp_le_u32 s72, 8\ns_cbranch_scc1 {l}\ns_branch {lend}\n{slow}:")
        mm(2)
        mm(3)
        self.wait(self.VA_POLL, 2, "s63")
        reads(0, 0)
        reads(1, 1)
        self(f"s_branch {l}\n{lend}:\ns_waitcnt lgkmcnt(0)")
        self.stamp(2)
        c = 0.25 * LOG2E
        self(f"""s_lshl1_add_u32 s66, s60, s64
        s_lshl_b32 s67, s61, 2
        s_lshl1_add_u32 s67, s65, s67
        s_lshl_b32 s68, s67, 6
        s_add_u32 s68, s68, s66
        s_lshl_b32 s69, s68, 10
        s_add_u32 s70, s69, 65536
        s_lshl_b32 s68, s68, 11
        s_add_u32 s68, s68, {WS_KV}
        s_add_u32 s71, s68, 131072
        v_lshlrev_b32 v4, 4, v0
        v_and_b32 v1, 0x33, v0
        v_bfe_u32 v2, v0, 2, 1
        v_lshl_or_b32 v1, v2, 3, v1
        v_bfe_u32 v2, v0, 3, 1
        v_lshl_or_b32 v1, v2, 2, v1
        v_lshlrev_b32 v5, 4, v1
        v_and_b32 v1, 15, v0
        v_lshlrev_b32 v6, 4, v1
        v_bfe_u32 v1, v0, 4, 1
        v_lshl_add_u32 v6, v1, 17, v6
        v_lshrrev_b32 v1, 5, v0
        v_lshl_add_u32 v6, v1, 8, v6
        s_mov_b32 s52, {f32(c)}""")
        for i in range(8):
            self(f"v_cvt_pk_bf16_f32 v{12+i}, v{AK+2*i}, v{AK+2*i+1}")
        for i in range(8):
            self(f"v_cvt_pk_bf16_f32 v{20+i}, v{AV+2*i}, v{AV+2*i+1}")
        self(f"""buffer_store_dwordx4 v[12:15], v5, s[{SRD_WS}:{SRD_WS+3}], s68 offen{self.sc}
        buffer_store_dwordx4 v[16:19], v5, s[{SRD_WS}:{SRD_WS+3}], s71 offen{self.sc}
        buffer_store_dwordx4 v[20:23], v6, s[{SRD_WS}:{SRD_WS+3}], s68 offen offset:1024{self.sc}
        buffer_store_dwordx4 v[24:27], v6, s[{SRD_WS}:{SRD_WS+3}], s68 offen offset:1536{self.sc}""")
        for i in range(16):
            self(f"v_mul_f32 v{AQ+i}, s52, v{AQ+i}")
        for i in range(8):
            self(f"v_cvt_pk_bf16_f32 v{28+i}, v{AQ+2*i}, v{AQ+2*i+1}")
        self(f"""buffer_store_dwordx4 v[28:31], v4, s[{SRD_WS}:{SRD_WS+3}], s69 offen{self.sc}
        buffer_store_dwordx4 v[32:35], v4, s[{SRD_WS}:{SRD_WS+3}], s70 offen{self.sc}""")
        if self.mega:
            self(f"""s_lshl_b32 s52, s67, 5
            s_add_u32 s52, s52, s66
            s_lshl_b32 s52, s52, 7
            s_add_u32 s52, s52, {WS_FQ}""")
            self.gsignal(52, 1, 2)

    def attention(self):
        Q, KB, VB, P2, S, O, NM = 4, [8, 12], [16, 24], 32, [40, 56], 72, 88
        VSIG, VPOLL, VK, VV, VKN, VVN, VD, VIDX, VT, VGT = 104, 105, 107, 108, 109, 110, 111, 112, 113, 114
        NS = 3
        sc = self.sc
        self(f"""s_and_b32 s52, s{S_WG}, 7
        s_lshr_b32 s53, s{S_WG}, 3
        s_and_b32 s60, s53, 3
        s_lshl2_add_u32 s60, s52, s60
        s_lshr_b32 s61, s53, 2
        s_lshl3_add_u32 s66, s61, s{S_WAVE}
        s_lshl_b32 s63, s60, 17
        s_add_u32 s63, s63, {WS_KV}
        s_lshl_b32 s52, s{S_WAVE}, 11
        s_add_u32 s67, s63, s52
        s_mov_b32 s62, s61
        v_lshlrev_b32 v{VD}, 4, v0
        s_lshl_b32 s68, s60, 6
        s_add_u32 s68, s68, s66
        s_lshl_b32 s68, s68, 10""")
        self.sync_regs(VSIG, VPOLL, 0, 8)
        base = 0
        if self.mega:
            self(f"""v_and_b32 v1, 3, v0
            v_bfe_u32 v2, v0, 2, 2
            v_lshlrev_b32 v1, 10, v1
            v_lshl_add_u32 v1, v2, 2, v1
            s_lshl_b32 s52, s66, 4
            s_add_u32 s52, s52, {WS_FH}
            v_add_u32 v1, s52, v1""")
            self.gwait(1, 2, sleep=8)
        self(f"""v_and_b32 v1, 31, v0
        v_lshlrev_b32 v{VGT}, 2, v1
        s_lshl_b32 s70, s66, 7
        s_add_u32 s70, s70, {WS_G}
        buffer_load_dword v{VGT}, v{VGT}, s[{SRD_WS}:{SRD_WS+3}], s70 offen{sc}""")
        if self.mega:
            base = 9
            lw, lj = self.lab("AW"), self.lab("AW")
            self.stamp(3)
            self(f"""s_cmp_eq_u32 s{S_WAVE}, 7
            s_cbranch_scc0 {lw}
            s_lshr_b32 s52, s60, 1
            s_lshl_b32 s52, s52, 13
            s_add_u32 s52, s52, {WS_FQ}
            v_lshl_add_u32 v1, v0, 7, s52""")
            self.wait(VPOLL, 2, 8, sleep=True)
            self.gwait(1, 2, sleep=2)
            self.signal(VSIG, 2, 9)
            self(f"s_branch {lj}\n{lw}:\nv_mov_b32 v1, {LDS_SYNC + 28}")
            self.wait(1, 2, 9, sleep=True)
            self(f"{lj}:")
            self.stamp(4)
        self(f"buffer_load_dwordx4 v[{Q}:{Q+3}], v{VD}, s[{SRD_WS}:{SRD_WS+3}], s68 offen{sc}")

        def dma():
            self(f"""s_lshl_b32 s52, s62, 14
            s_mov_b32 m0, s69
            s_add_u32 s52, s52, s67
            buffer_load_dwordx4 v{VD}, s[{SRD_WS}:{SRD_WS+3}], s52 offen{sc} lds
            buffer_load_dwordx4 v{VD}, s[{SRD_WS}:{SRD_WS+3}], s52 offen offset:1024{sc} lds
            s_add_u32 s62, s62, 1
            s_and_b32 s62, s62, 7
            s_add_u32 s69, s69, 16384
            s_cmp_ge_u32 s69, {NS*16384}
            s_cselect_b32 s52, {NS*16384}, 0
            s_sub_u32 s69, s69, s52""")

        self(f"s_lshl_b32 s69, s{S_WAVE}, 11")
        dma()
        dma()
        self(f"""v_mov_b32 v{VIDX}, 0xdddddddd
        v_mov_b32 v{VK}, v{VD}
        v_and_b32 v1, 15, v0
        v_lshlrev_b32 v1, 4, v1
        v_lshrrev_b32 v2, 5, v0
        v_lshl_add_u32 v{VV}, v2, 8, v1
        v_add_u32 v{VV}, 1024, v{VV}
        v_add_u32 v{VKN}, 16384, v{VK}
        v_add_u32 v{VVN}, 16384, v{VV}
        s_mov_b32 s{S_VMASK}, 0x0000ffff
        s_mov_b32 s{S_VMASK+1}, 0x0000ffff
        v_and_b32 v1, 31, v0
        v_cmp_eq_u32 vcc, 16, v1
        v_mov_b32 v2, 0x3f803f80
        s_nop 0
        v_cndmask_b32 v{VB[0]}, 0, v2, vcc""")
        for i in range(1, 16):
            self(f"v_mov_b32 v{VB[0]+i}, v{VB[0]}")
        for i in range(16):
            self(f"v_mov_b32 v{O+i}, 0")
        for i in range(8):
            self(f"v_mov_b32 v{P2+i}, 0")
        self(f"s_waitcnt vmcnt(2)")
        self.signal(VSIG, 1, base + 1)
        self.wait(VPOLL, 1, base + 1)
        self.stamp(5)
        if self.cyc: self.stamp(1, True)
        self(f"""ds_read_b128 v[{KB[0]}:{KB[0]+3}], v{VK}
        ds_read_b128 v[{KB[1]}:{KB[1]+3}], v{VK} offset:2048
        s_mov_b64 exec, s[{S_VMASK}:{S_VMASK+1}]
        ds_read_b128 v[{VB[0]}:{VB[0]+3}], v{VV}
        ds_read_b128 v[{VB[0]+4}:{VB[0]+7}], v{VV} offset:512
        s_mov_b64 exec, -1
        s_waitcnt lgkmcnt(3)
        v_mfma_f32_32x32x16_bf16 v[{S[1]}:{S[1]+15}], v[{KB[0]}:{KB[0]+3}], v[{Q}:{Q+3}], 0
        s_mov_b32 s64, {base+2}
        s_mov_b32 s65, 0
        s_mov_b32 s71, 16384
        s_nop 9""")
        self.rowmax(S[1], NM)
        self(f"s_nop 1\nv_mfma_f32_32x32x16_bf16 v[{S[0]}:{S[0]+15}], v[{KB[0]}:{KB[0]+3}], v[{Q}:{Q+3}], v[{NM}:{NM+15}]\ns_nop 9")
        loop, slow, back, norefill = self.lab("AL"), self.lab("AS"), self.lab("AB"), self.lab("AN")
        self(f".p2align 6\n{loop}:")
        for n in range(8):
            cur, nxt = S[n & 1], S[(n + 1) & 1]
            extra = 1 if n in (2, 4) else 0
            self("s_waitcnt lgkmcnt(2)")
            if n == 5:
                self(f"v_cmp_gt_u32 vcc, s64, v{VT}\ns_cbranch_vccnz {slow}\n{back}:")
            self(f"v_mfma_f32_32x32x16_bf16 v[{nxt}:{nxt+15}], v[{KB[(n+1)&1]}:{KB[(n+1)&1]+3}], v[{Q}:{Q+3}], v[{NM}:{NM+15}]")
            if n + 2 < 8:
                self(f"ds_read_b128 v[{KB[n&1]}:{KB[n&1]+3}], v{VK} offset:{(n+2)*2048}")
            else:
                self(f"ds_read_b128 v[{KB[n&1]}:{KB[n&1]+3}], v{VKN} offset:{(n+2-8)*2048}")
            if n == 2:
                self("s_waitcnt vmcnt(0)")
                self.signal(VSIG, VT, "s64")
            if n == 4:
                self(f"ds_read_b32 v{VT}, v{VPOLL}")
            for i in range(0, 4):
                self(f"v_exp_f32 v{cur+i}, v{cur+i}")
            vb = VB[(n + 1) & 1]
            self(f"v_smfmac_f32_32x32x32_bf16 v[{O}:{O+15}], v[{vb+4}:{vb+7}], v[{P2}:{P2+7}], v{VIDX}")
            va, off = (VV, (n + 1) * 2048) if n + 1 < 8 else (VVN, 0)
            self(f"""s_mov_b64 exec, s[{S_VMASK}:{S_VMASK+1}]
            ds_read_b128 v[{vb}:{vb+3}], v{va} offset:{off}
            ds_read_b128 v[{vb+4}:{vb+7}], v{va} offset:{off+512}
            s_mov_b64 exec, -1""")
            for i in range(4, 8):
                self(f"v_exp_f32 v{cur+i}, v{cur+i}")
            for i in range(8, 10):
                self(f"v_exp_f32 v{P2+i-8}, v{cur+i}")
            vb = VB[n & 1]
            self(f"s_waitcnt lgkmcnt({3+extra})")
            self(f"v_smfmac_f32_32x32x32_bf16 v[{O}:{O+15}], v[{vb}:{vb+3}], v[{cur}:{cur+7}], v{VIDX}")
            if n == 5:
                self(f"s_cmp_gt_u32 s65, 5\ns_cbranch_scc1 {norefill}")
                dma()
                self(f"{norefill}:")
            for i in range(10, 16):
                self(f"v_exp_f32 v{P2+i-8}, v{cur+i}")
            if n == 7:
                self(f"""v_mov_b32 v{VK}, v{VKN}
                v_mov_b32 v{VV}, v{VVN}
                s_add_u32 s53, s71, 16384
                s_cmp_eq_u32 s53, {NS*16384}
                s_cselect_b32 s53, 0, s53
                s_sub_u32 s52, s53, s71
                s_mov_b32 s71, s53
                v_add_u32 v{VKN}, s52, v{VKN}
                v_add_u32 v{VVN}, s52, v{VVN}
                s_add_u32 s64, s64, 1
                s_add_u32 s65, s65, 1
                s_cmp_lt_u32 s65, 8
                s_cbranch_scc1 {loop}""")
        self.stamp(6)
        if self.cyc: self.stamp(2, True)
        self(f"v_smfmac_f32_32x32x32_bf16 v[{O}:{O+15}], v[{VB[1]+4}:{VB[1]+7}], v[{P2}:{P2+7}], v{VIDX}")
        fin, fb = self.lab("AF"), self.lab("AR")
        self(f"""s_nop 11
        v_mov_b32 v1, v{O+8}
        v_mov_b32 v2, {f32(2.0**60)}
        s_movk_i32 s52, 0x207
        v_permlane32_swap_b32 v{O+8}, v1
        s_nop 1
        v_cmp_nle_f32 vcc, v{O+8}, v2""")
        for i in range(8):
            self(f"v_cmp_class_f32 s[54:55], v{O+i}, s52\ns_or_b64 vcc, vcc, s[54:55]")
        self(f"s_cbranch_vccnz {fb}\n{fin}:")
        self(f"""v_rcp_f32 v1, v{O+8}
        s_lshl_b32 s52, s66, 5
        s_add_u32 s52, s52, s60
        s_lshl_b32 s53, s52, 10
        s_add_u32 s53, s53, {WS_O}
        v_mul_f32 v1, v1, v{VGT}""")
        for i in range(8):
            self(f"v_mul_f32 v{O+i}, v{O+i}, v1")
        for i in range(4):
            self(f"v_cvt_pk_bf16_f32 v{Q+i}, v{O+2*i}, v{O+2*i+1}")
        self(f"buffer_store_dwordx4 v[{Q}:{Q+3}], v{VD}, s[{SRD_WS}:{SRD_WS+3}], s53 offen{sc}")
        if self.mega:
            self(f"s_lshl_b32 s52, s52, 7\ns_add_u32 s52, s52, {WS_FO}")
            self.gsignal(52, 1, 2)
        self.end()
        self(f"{slow}:")
        self.wait(VPOLL, VT, "s64")
        self(f"s_branch {back}")
        self(f"{fb}:\ns_waitcnt lgkmcnt(0)\nv_mov_b32 v{VK}, 0xff800000\ns_mov_b32 s65, 0\ns_mov_b32 s52, s63")
        l = self.lab("AR")
        self(f"""{l}:
        buffer_load_dwordx4 v[{KB[0]}:{KB[0]+3}], v{VD}, s[{SRD_WS}:{SRD_WS+3}], s52 offen{sc}
        s_waitcnt vmcnt(0)
        v_mfma_f32_32x32x16_bf16 v[{S[0]}:{S[0]+15}], v[{KB[0]}:{KB[0]+3}], v[{Q}:{Q+3}], 0
        s_nop 15""")
        for i in range(8):
            self(f"v_max3_f32 v{VK}, v{S[0]+2*i}, v{S[0]+2*i+1}, v{VK}")
        self(f"""s_add_u32 s52, s52, 2048
        s_add_u32 s65, s65, 1
        s_cmp_lt_u32 s65, 64
        s_cbranch_scc1 {l}
        v_mov_b32 v1, v{VK}
        s_nop 1
        v_permlane32_swap_b32 v{VK}, v1
        s_nop 1
        v_max_f32 v1, v1, v{VK}""")
        for i in range(16):
            self(f"v_sub_f32 v{NM+i}, 0, v1\nv_mov_b32 v{O+i}, 0")
        self(f"""v_and_b32 v1, 15, v0
        v_lshlrev_b32 v1, 4, v1
        v_lshrrev_b32 v2, 5, v0
        v_lshl_add_u32 v{VV}, v2, 8, v1
        s_mov_b32 s65, 0
        s_mov_b32 s52, s63""")
        l = self.lab("AR")
        self(f"""{l}:
        buffer_load_dwordx4 v[{KB[0]}:{KB[0]+3}], v{VD}, s[{SRD_WS}:{SRD_WS+3}], s52 offen{sc}
        s_mov_b64 exec, s[{S_VMASK}:{S_VMASK+1}]
        buffer_load_dwordx4 v[{VB[0]}:{VB[0]+3}], v{VV}, s[{SRD_WS}:{SRD_WS+3}], s52 offen offset:1024{sc}
        buffer_load_dwordx4 v[{VB[0]+4}:{VB[0]+7}], v{VV}, s[{SRD_WS}:{SRD_WS+3}], s52 offen offset:1536{sc}
        s_mov_b64 exec, -1
        s_waitcnt vmcnt(0)
        v_mfma_f32_32x32x16_bf16 v[{S[0]}:{S[0]+15}], v[{KB[0]}:{KB[0]+3}], v[{Q}:{Q+3}], v[{NM}:{NM+15}]
        s_nop 15""")
        for i in range(16):
            self(f"v_exp_f32 v{S[0]+i}, v{S[0]+i}")
        self(f"""s_nop 1
        v_smfmac_f32_32x32x32_bf16 v[{O}:{O+15}], v[{VB[0]}:{VB[0]+3}], v[{S[0]}:{S[0]+7}], v{VIDX}
        v_smfmac_f32_32x32x32_bf16 v[{O}:{O+15}], v[{VB[0]+4}:{VB[0]+7}], v[{S[0]+8}:{S[0]+15}], v{VIDX}
        s_add_u32 s52, s52, 2048
        s_add_u32 s65, s65, 1
        s_cmp_lt_u32 s65, 64
        s_cbranch_scc1 {l}
        s_nop 15
        v_mov_b32 v1, v{O+8}
        s_nop 1
        v_permlane32_swap_b32 v{O+8}, v1
        s_nop 1
        s_branch {fin}""")

    def rowmax(self, s, nm):
        self(f"v_max3_f32 v1, v{s}, v{s+1}, v{s+2}\nv_max3_f32 v2, v{s+3}, v{s+4}, v{s+5}")
        for i in range(6, 14, 4):
            self(f"v_max3_f32 v1, v{s+i}, v{s+i+1}, v1\nv_max3_f32 v2, v{s+i+2}, v{s+i+3}, v2")
        self(f"""v_max3_f32 v1, v{s+14}, v{s+15}, v1
        v_max_f32 v1, v1, v2
        v_mov_b32 v2, v1
        s_nop 1
        v_permlane32_swap_b32 v1, v2
        s_nop 1
        v_max_f32 v1, v1, v2""")
        for i in range(16):
            self(f"v_sub_f32 v{nm+i}, 0, v1")

    TB = [16, 24]
    FB = 32
    ACC = 88
    VTD, VTR0, VTR1, VFD, VTD2 = 4, 5, 6, 7, 164

    def g_setup(self, pitch, swapped, tbit):
        self(f"""v_lshrrev_b32 v1, 3, v0
        v_and_b32 v2, 7, v0
        v_bfe_u32 v3, v0, 4, 1
        v_lshlrev_b32 v3, 2, v3
        v_xor_b32 v2, v2, v3
        v_mul_u32_u24 v{self.VTD}, {pitch}, v1
        v_lshl_add_u32 v{self.VTD}, v2, 4, v{self.VTD}
        v_add_u32 v{self.VTD2}, {8*pitch-1024}, v{self.VTD}
        v_lshlrev_b32 v{self.VFD}, 4, v0
        v_bfe_u32 v1, v0, 2, 2
        v_lshrrev_b32 v2, 5, v0
        v_lshl_add_u32 v3, v2, {2 if swapped else 3}, v1
        v_lshlrev_b32 v3, 7, v3
        v_lshrrev_b32 v1, 1, v1
        s_bfe_u32 s52, s54, {0x10000 | tbit}
        v_xor_b32 v1, s52, v1
        v_lshl_add_u32 v3, v1, 6, v3
        v_bfe_u32 v1, v0, 4, 1
        v_lshl_add_u32 v3, v1, 5, v3
        v_and_b32 v1, 3, v0
        v_lshl_add_u32 v3, v1, 3, v3
        s_mul_i32 s58, s54, {GRING}
        s_add_u32 s58, s58, {LDS_G}
        v_add_u32 v{self.VTR0}, s58, v3
        v_xor_b32 v{self.VTR1}, 64, v{self.VTR0}""")

    def g_T(self, i, n, srdT, pitch):
        slot = i % R
        return [f"""s_mul_i32 s52, s74, {16*pitch}
        s_add_u32 m0, s58, {slot*2048}
        s_add_u32 s52, s52, s76
        buffer_load_dwordx4 v{self.VTD}, s[{srdT}:{srdT+3}], s52 offen lds""",
        f"""buffer_load_dwordx4 v{self.VTD2}, s[{srdT}:{srdT+3}], s52 offen offset:1024 lds
        s_add_u32 s74, s74, 1
        s_cmp_eq_u32 s74, {n}
        s_cselect_b32 s74, 0, s74"""]

    def g_F(self, i, n):
        f = self.FB + (i % R) * 8
        return [f"""s_lshl_b32 s53, s75, 10
        s_add_u32 s59, s53, s77
        buffer_load_dwordx4 v[{f}:{f+3}], v{self.VFD}, s[{SRD_WS}:{SRD_WS+3}], s59 offen{self.sc}""",
        f"""s_add_u32 s59, s53, s78
        buffer_load_dwordx4 v[{f+4}:{f+7}], v{self.VFD}, s[{SRD_WS}:{SRD_WS+3}], s59 offen{self.sc}
        s_add_u32 s75, s75, 1
        s_cmp_eq_u32 s75, {n}
        s_cselect_b32 s75, 0, s75"""]

    def g_issue_T(self, i, n, srdT, pitch):
        for x in self.g_T(i, n, srdT, pitch):
            self(x)

    def g_reads(self, i, swapped):
        t = self.TB[i & 1]
        o = (i % R) * 2048
        d = 1024 if swapped else 512
        self(f"""ds_read_b64_tr_b16 v[{t}:{t+1}], v{self.VTR0} offset:{o}
        ds_read_b64_tr_b16 v[{t+2}:{t+3}], v{self.VTR0} offset:{o+d}
        ds_read_b64_tr_b16 v[{t+4}:{t+5}], v{self.VTR1} offset:{o}
        ds_read_b64_tr_b16 v[{t+6}:{t+7}], v{self.VTR1} offset:{o+d}""")

    def g_mm(self, i, kind, first, q):
        t = self.TB[i & 1]
        f = self.FB + (i % R) * 8
        a = self.ACC + 16 * q
        c = "0" if first else f"v[{a}:{a+15}]"
        if kind == "g1":
            A, B = t + 4 * (q & 1), f + 4 * (q >> 1)
        elif kind == "g2":
            A, B = f + 4 * (q >> 1), t + 4 * (q & 1)
        else:
            A, B = t + 4 * (q >> 1), f + 4 * (q & 1)
        self(f"v_mfma_f32_32x32x16_bf16 v[{a}:{a+15}], v[{A}:{A+3}], v[{B}:{B+3}], {c}")

    def g_pass(self, n, kind, srdT, pitch, swapped, zero_first, t_pre=0, dist=D):
        order = []

        def wait_for(step):
            last = max(k for k, s in enumerate(order) if s <= step)
            self(f"s_waitcnt vmcnt({min(len(order) - 1 - last, 63)})")

        order += [s for s in range(t_pre) for _ in range(2)]
        for i in range(min(dist, n)):
            for x in ([] if i < t_pre else self.g_T(i, n, srdT, pitch)) + self.g_F(i, n):
                self(x); order.append(i)
        wait_for(0)
        self.g_reads(0, swapped)
        for i in range(n):
            j = i + dist if dist < R else i + dist - 1
            ops = []
            if j < n and j >= dist:
                ops = ([] if j < t_pre else self.g_T(j, n, srdT, pitch)) + self.g_F(j, n)
            z = zero_first and i == 0
            self("s_waitcnt lgkmcnt(0)")
            self.g_mm(i, kind, z, 0)
            if i + 1 < n:
                wait_for(i + 1)
                self.g_reads(i + 1, swapped)
            self.g_mm(i, kind, z, 1)
            for q, k in ((2, 1), (3, 2), (None, 1)):
                for _ in range(k):
                    if ops:
                        self(ops.pop(0)); order.append(j)
                if q is not None:
                    self.g_mm(i, kind, z, q)

    def g_reduce(self, sigval):
        A = self.ACC
        self(f"s_setprio 3\nv_lshl_add_u32 v1, v0, 4, s58\ns_nop 10")
        for t in range(1, 4):
            for k in range(4):
                r = A + 16 * t + 4 * k
                self(f"ds_write_b128 v1, v[{r}:{r+3}] offset:{(t-1)*4096 + k*1024}")
        self.signal(self.VG_SIG, 2, sigval)
        for t in range(1, 4):
            self(f"""s_xor_b32 s52, s54, {t}
            s_mul_i32 s52, s52, {GRING}
            s_add_u32 s52, s52, {LDS_G + (t-1)*4096}
            v_lshl_add_u32 v{7+t}, v0, 4, s52""")
        self.wait(self.VG_POLL, 2, sigval)
        for t in range(1, 4):
            for k in range(4):
                r = A + 16 * t + 4 * k
                self(f"ds_read_b128 v[{r}:{r+3}], v{7+t} offset:{k*1024}")
        self.signal(self.VG_SIG, 2, sigval + 1)
        for t in range(1, 4):
            self(f"s_waitcnt lgkmcnt({(3-t)*4+1})")
            for k in range(16):
                self(f"v_add_f32 v{A+k}, v{A+k}, v{A+16*t+k}")

    def g_start(self):
        if self.gstart == 8:
            self(f"v_and_b32 v1, 3, v0\nv_lshlrev_b32 v1, 2, v1\nv_add_u32 v1, {LDS_SYNC}, v1")
        else:
            self(f"v_mov_b32 v1, {LDS_SYNC + 28}")
        self.wait(1, 2, self.gstart, sleep=True)

    def g1_map(self):
        self(f"""s_sub_u32 s54, s{S_WAVE}, 8
        s_and_b32 s52, s{S_WG}, 7
        s_lshr_b32 s82, s{S_WG}, 3
        s_and_b32 s53, s52, 1
        s_mul_i32 s53, s53, 28
        s_add_u32 s53, s53, s82
        s_lshr_b32 s52, s52, 1
        s_mul_i32 s80, s52, 7
        s_lshr_b32 s52, s53, 3
        s_add_u32 s80, s80, s52
        s_and_b32 s81, s53, 7""")

    def g1_setup(self):
        self.srd(SRD_3, P_W1, 2048 * 3584)
        self.srd(SRD_4, P_B1, 3584)
        self.g_setup(3584, False, 0)
        self(f"""s_lshl2_add_u32 s74, s81, s80
        s_and_b32 s74, s74, 31
        s_mov_b32 s75, s74
        s_mul_i32 s76, s54, {512*3584}
        s_lshl_b32 s52, s80, 7
        s_add_u32 s76, s76, s52
        s_lshr_b32 s52, s54, 1
        s_lshl1_add_u32 s52, s81, s52
        s_lshl_b32 s77, s52, 17
        s_lshl_b32 s53, s54, 15
        s_add_u32 s77, s77, s53
        s_add_u32 s77, s77, {WS_HT}
        s_xor_b32 s78, s77, {1 << 17}""")

    def g1_main(self, sig0):
        A = self.ACC
        t_pre = 0
        if self.mega:
            self.g_start()
            t_pre = D
            for i in range(D):
                self.g_issue_T(i, 32, SRD_3, 3584)
            self(f"""s_lshr_b32 s52, s81, 1
            s_lshl_b32 s52, s52, 10
            s_lshl_b32 s53, s54, 8
            s_add_u32 s52, s52, s53
            s_add_u32 s52, s52, {WS_FH}
            v_lshl_add_u32 v1, v0, 2, s52""")
            self.stamp(2)
            self.gwait(1, 2)
        self.stamp(3)
        self(f"s_setprio {self.gprio}")
        self.g_pass(32, "g1", SRD_3, 3584, False, True, t_pre=t_pre)
        self.stamp(4)
        self(f"""v_lshrrev_b32 v1, 5, v0
        v_lshlrev_b32 v1, 3, v1
        s_and_b32 s53, s54, 1
        s_lshl1_add_u32 s83, s80, s53
        s_lshl_b32 s52, s83, 6""")
        for g in range(4):
            self(f"buffer_load_dwordx2 v[{16+2*g}:{17+2*g}], v1, s[{SRD_4}:{SRD_4+3}], s52 offen offset:{16*g}")
        self.g_reduce(sig0 + 1)
        self("s_waitcnt vmcnt(0)")
        k0 = -2.0 * math.sqrt(2.0 / math.pi) * LOG2E
        k1 = k0 * 0.044715
        self(f"s_mov_b32 s52, {f32(k1)}\nv_mov_b32 v3, {f32(k0)}")
        T = A + 16
        for k in range(16):
            src = 16 + k // 2
            if k & 1:
                self(f"v_and_b32 v{T+k}, 0xffff0000, v{src}")
            else:
                self(f"v_lshlrev_b32 v{T+k}, 16, v{src}")
        for k in range(16):
            self(f"v_add_f32 v{A+k}, v{A+k}, v{T+k}")
        for k in range(16):
            self(f"v_mul_f32 v{T+k}, v{A+k}, v{A+k}")
        for k in range(16):
            self(f"v_fma_f32 v{T+k}, v{T+k}, s52, v3")
        for k in range(16):
            self(f"v_mul_f32 v{T+k}, v{T+k}, v{A+k}")
        for k in range(16):
            self(f"v_exp_f32 v{T+k}, v{T+k}")
        for k in range(16):
            self(f"v_add_f32 v{T+k}, 1.0, v{T+k}")
        for k in range(16):
            self(f"v_rcp_f32 v{T+k}, v{T+k}")
        for k in range(16):
            self(f"v_mul_f32 v{A+k}, v{A+k}, v{T+k}")
        for k in range(8):
            self(f"v_cvt_pk_bf16_f32 v{16+k}, v{A+2*k}, v{A+2*k+1}")
        self(f"""s_lshr_b32 s52, s54, 1
        s_lshl1_add_u32 s52, s81, s52
        s_mul_i32 s53, s52, 112
        s_lshl1_add_u32 s53, s83, s53
        s_lshl_b32 s53, s53, 10
        s_add_u32 s53, s53, {WS_U}
        buffer_store_dwordx4 v[16:19], v{self.VFD}, s[{SRD_WS}:{SRD_WS+3}], s53 offen{self.sc}
        buffer_store_dwordx4 v[20:23], v{self.VFD}, s[{SRD_WS}:{SRD_WS+3}], s53 offen offset:1024{self.sc}""")
        if self.mega:
            self(f"""s_lshr_b32 s52, s54, 1
            s_lshl1_add_u32 s52, s81, s52
            s_lshl_b32 s52, s52, 6
            s_add_u32 s52, s52, s83
            s_lshl_b32 s52, s52, 7
            s_add_u32 s52, s52, {WS_FU}""")
            self.gsignal(52, 1, 2)

    def g23(self, ring_free_val, red_val):
        A = self.ACC
        VG0, VG1, VB2 = 11, 12, 13
        self(f"""s_sub_u32 s54, s{S_WAVE}, 8
        s_and_b32 s52, s{S_WG}, 7
        s_lshr_b32 s82, s{S_WG}, 3
        s_and_b32 s80, s82, 3
        s_lshl2_add_u32 s80, s52, s80
        s_lshr_b32 s81, s82, 2""")
        self.srd(SRD_3, P_W2, 1792 * 4096)
        self.srd(SRD_4, P_WO, 512 * 1024)
        self.srd(SRD_1, P_B2, 4096)
        self.srd(SRD_2, P_OUT, 2048 * 1024)
        self.g_setup(4096, True, 0)
        self(f"""s_cmp_ge_u32 s82, 28
        s_cselect_b32 s52, 28, 0
        s_sub_u32 s74, s82, s52
        s_mov_b32 s75, s74
        s_mul_i32 s76, s54, {28*16*4096}
        s_lshl_b32 s52, s80, 7
        s_add_u32 s76, s76, s52
        s_lshr_b32 s52, s54, 1
        s_lshl1_add_u32 s52, s81, s52
        s_xor_b32 s53, s52, 1
        s_mul_i32 s77, s52, {112*1024}
        s_mul_i32 s78, s53, {112*1024}
        s_mul_i32 s53, s54, {28*1024}
        s_add_u32 s53, s53, {WS_U}
        s_add_u32 s77, s77, s53
        s_add_u32 s78, s78, s53""")
        if ring_free_val:
            self.wait(self.VG_POLL, 2, ring_free_val)
        self(f"s_and_b32 s52, s54, 1\ns_lshl1_add_u32 s83, s80, s52")
        t_pre = 0
        if self.mega:
            t_pre = D
            for i in range(D):
                self.g_issue_T(i, 28, SRD_3, 4096)
            self(f"""v_and_b32 v1, 3, v0
            v_bfe_u32 v2, v0, 2, 3
            v_lshlrev_b32 v1, 10, v1
            v_lshl_add_u32 v1, v2, 2, v1
            s_lshl_b32 s52, s80, 5
            s_add_u32 s52, s52, {WS_FH}
            v_add_u32 v1, s52, v1""")
            self.gwait(1, 2)
        self(f"""v_and_b32 v1, 31, v0
        v_lshlrev_b32 v2, 2, v1
        v_lshlrev_b32 v1, 1, v1
        s_lshl_b32 s52, s83, 7
        s_add_u32 s52, s52, {WS_G}
        s_xor_b32 s53, s52, 128
        buffer_load_dword v{VG0}, v2, s[{SRD_WS}:{SRD_WS+3}], s52 offen{self.sc}
        buffer_load_dword v{VG1}, v2, s[{SRD_WS}:{SRD_WS+3}], s53 offen{self.sc}
        s_lshl_b32 s52, s83, 6
        buffer_load_ushort v{VB2}, v1, s[{SRD_1}:{SRD_1+3}], s52 offen""")
        if self.mega:
            self(f"""s_lshl_b32 s52, s81, 7
            s_mul_i32 s53, s54, 14
            s_add_u32 s52, s52, s53
            s_lshl_b32 s52, s52, 7
            s_add_u32 s52, s52, {WS_FU}
            v_lshrrev_b32 v1, 1, v0
            v_min_u32 v1, 13, v1
            v_and_b32 v2, 1, v0
            v_lshl_add_u32 v1, v2, 6, v1
            v_lshl_add_u32 v1, v1, 7, s52""")
            self("s_setprio 0")
            self.gwait(1, 2, sleep=8)
        self.stamp(5)
        self(f"s_setprio {self.gprio}")
        self.g_pass(28, "g2", SRD_3, 4096, True, True, t_pre=t_pre)
        self.stamp(6)
        self("s_setprio 3")
        self.g_setup(1024, True, 1)
        self(f"""s_and_b32 s74, s82, 7
        s_mov_b32 s75, s74
        s_lshl_b32 s76, s54, 17
        s_lshl_b32 s52, s81, 7
        s_add_u32 s76, s76, s52
        s_lshl_b32 s77, s83, 15
        s_lshl_b32 s53, s54, 13
        s_add_u32 s77, s77, s53
        s_add_u32 s77, s77, {WS_O}
        s_xor_b32 s78, s77, {1 << 15}""")
        for i in range(R):
            self.g_issue_T(i, 8, SRD_4, 1024)
        self(f"v_sub_f32 v{VG0}, 1.0, v{VG0}\nv_sub_f32 v{VG1}, 1.0, v{VG1}\nv_lshlrev_b32 v{VB2}, 16, v{VB2}")
        for q in range(4):
            for k in range(16):
                self(f"v_mul_f32 v{A+16*q+k}, v{A+16*q+k}, v{VG1 if q & 1 else VG0}")
        for k in range(16):
            self(f"v_fmac_f32 v{A+k}, v{VB2}, v{VG0}")
        if self.mega:
            self(f"""s_lshl_b32 s52, s80, 6
            s_lshl3_add_u32 s52, s54, s52
            s_lshl_b32 s52, s52, 7
            s_add_u32 s52, s52, {WS_FO}
            v_bfe_u32 v1, v0, 1, 3
            v_and_b32 v2, 1, v0
            v_lshl_add_u32 v1, v2, 5, v1
            v_lshl_add_u32 v1, v1, 7, s52
            s_setprio 0""")
            self.gwait(1, 2, sleep=4)
            self("s_setprio 3")
        self.stamp(7)
        self.g_pass(8, "op", SRD_4, 1024, True, False, t_pre=R, dist=R)
        self.g_reduce(red_val)
        for k in range(8):
            self(f"v_cvt_pk_bf16_f32 v{16+k}, v{A+2*k}, v{A+2*k+1}")
        self(f"""v_and_b32 v1, 31, v0
        v_lshlrev_b32 v1, 10, v1
        v_lshrrev_b32 v2, 5, v0
        v_lshl_add_u32 v1, v2, 4, v1
        s_lshr_b32 s52, s54, 1
        s_lshl1_add_u32 s52, s81, s52
        s_lshl_b32 s52, s52, 6
        s_lshl_b32 s53, s83, 15
        s_add_u32 s52, s52, s53
        v_permlane32_swap_b32 v16, v18
        v_permlane32_swap_b32 v17, v19
        v_permlane32_swap_b32 v20, v22
        v_permlane32_swap_b32 v21, v23
        s_nop 1
        buffer_store_dwordx4 v[16:19], v1, s[{SRD_2}:{SRD_2+3}], s52 offen
        buffer_store_dwordx4 v[20:23], v1, s[{SRD_2}:{SRD_2+3}], s52 offen offset:32""")
        if self.mega:
            l = self.lab("EP")
            self(f"""s_lshl4_add_u32 s52, s{S_WG}, s54
            s_cmp_lg_u32 s52, 0
            s_cbranch_scc1 {l}
            s_mov_b32 s52, {WS_EPOCH}""")
            self.gsignal(52, 1, 2)
            self(f"{l}:")


def descriptor(label, nv):
    return f""".amdhsa_kernel {label}
  .amdhsa_next_free_vgpr {nv}
  .amdhsa_next_free_sgpr 102
  .amdhsa_accum_offset {nv}
  .amdhsa_group_segment_fixed_size 0
  .amdhsa_kernarg_size 96
  .amdhsa_user_sgpr_count 2
  .amdhsa_user_sgpr_kernarg_segment_ptr 1
  .amdhsa_system_sgpr_workgroup_id_x 1
.end_amdhsa_kernel
"""


HEAD = open("cdna_kernels/" + NAME + ".s.ref").read().split("; Override launch")[0]


def build_multi(extra_empty=0, prof=False, opts={}):
    g = Gen(False, prof)
    g.__dict__.update(opts)
    launches = [("k1_kernel", 768), ("k2_kernel", 768), ("k3_kernel", 256)]
    g.prologue("k1_kernel", 0, "K1_exit")
    g(f"s_cmp_ge_u32 s{S_WAVE}, 8\ns_cbranch_scc1 K1_g\ns_cmp_ge_u32 s{S_WAVE}, 4\ns_cbranch_scc1 K1_l")
    g.qkv_compute()
    g.end()
    g("K1_exit:\ns_endpgm\nK1_l:")
    g.qkv_loader()
    g.end()
    g("K1_g:")
    g.ln_issue()
    g.sync_regs(g.VG_SIG, g.VG_POLL, 8, 4)
    g.ln(0)
    g.end()
    g.kid = 1
    g.prologue("k2_kernel", 0, "K2_exit")
    g(f"s_cmp_ge_u32 s{S_WAVE}, 8\ns_cbranch_scc1 K2_g")
    g.attention()
    g("K2_g:")
    g.sync_regs(g.VG_SIG, g.VG_POLL, 8, 4)
    g.g1_map()
    g("s_cmp_ge_u32 s82, 28\ns_cbranch_scc1 K2_exit")
    g.g1_setup()
    g.g1_main(0)
    g.end()
    g("K2_exit:\ns_endpgm")
    g.kid = 2
    g.prologue("k3_kernel", 8, "K3_exit")
    g.sync_regs(g.VG_SIG, g.VG_POLL, 8, 4)
    g.g23(0, 1)
    g.end()
    g("K3_exit:\ns_endpgm")
    kernels = [k for k, _ in launches]
    if extra_empty:
        g(".p2align 8\n.type k0_kernel,@function\nk0_kernel:\ns_endpgm")
        launches += [("k0_kernel", 64)] * extra_empty
        kernels.append("k0_kernel")
    out = HEAD
    for k, b in launches:
        out += f"; @launch kernel={k} grid=(256,1,1) block=({b},1,1) lds={LDS_TOTAL if k != 'k0_kernel' else 0}\n"
    out += '.amdgcn_target "amdgcn-amd-amdhsa--gfx950"\n.text\n'
    out += "\n".join(g.L) + '\n.section .rodata,"a"\n'
    for k in kernels:
        out += ".p2align 6\n" + descriptor(k, 168)
    return out


def build_mega(prof=False, opts={}):
    g = Gen(True, prof)
    g.__dict__.update(opts)
    k = NAME + "_kernel"
    g(f".globl {k}")
    g.prologue(k, 0, "M_exit")
    g(f"s_cmp_ge_u32 s{S_WAVE}, 8\ns_cbranch_scc1 M_g\ns_cmp_ge_u32 s{S_WAVE}, 4\ns_cbranch_scc1 M_l")
    g.qkv_compute()
    g("s_branch M_attn\nM_l:")
    g.qkv_loader()
    g("M_attn:")
    g.attention()
    g("M_g:")
    g.ln_issue()
    if g.tlb:
        g.touch()
    g.sync_regs(g.VG_SIG, g.VG_POLL, 8, 4)
    g.ln(3 if g.tlb else 0)
    g.g1_map()
    g("s_cmp_ge_u32 s82, 28\ns_cbranch_scc1 M_nog1")
    g.g1_setup()
    g.g1_main(2)
    g("s_branch M_g2\nM_nog1:")
    g.g_start()
    g.signal(g.VG_SIG, 2, 4)
    g("M_g2:")
    g.g23(4, 5)
    g.end()
    g("M_exit:\ns_endpgm")
    out = HEAD + f"; @launch grid=(256,1,1) block=(768,1,1) lds={LDS_TOTAL}\n"
    out += '.amdgcn_target "amdgcn-amd-amdhsa--gfx950"\n.text\n'
    out += "\n".join(g.L) + '\n.section .rodata,"a"\n.p2align 6\n' + descriptor(k, 168)
    return out


if __name__ == "__main__":
    mode = sys.argv[1]
    path = sys.argv[2]
    prof = "--prof" in sys.argv
    opts = {a.split("=")[0]: int(a.split("=")[1]) for a in sys.argv[3:] if "=" in a}
    if mode == "multi":
        s = build_multi(opts.pop("empty", 0), prof, opts)
    else:
        s = build_mega(prof, opts)
    open(path, "w").write(s)
```

```python
import sys, math

NAME = "gated_mix__softmax_full_mha__mixer_token_mlp__prompt"

WS_Q = 0x000000
WS_KV = 0x200000
WS_HT = 0x600000
WS_U = 0x800000
WS_O = 0xA00000
WS_G = 0xC00000
WS_FH = 0xD10000
WS_EPOCH = 0xD05000
WS_FQ = 0xD20000
WS_FU = 0xD40000
WS_FO = 0xD80000
WS_STAMP = 0xE00000
WS_FX = 0xD60000
WS_SIZE = 0x1000000

LDS_A = 0
LDS_G = 49152
LDS_LN = 131072
LNP = 1088
GRING = 14336
R = 7
D = 6
LDS_SYNC = LDS_LN + 8 * LNP
LDS_TOTAL = LDS_SYNC + 64
OOB = 0x40000

S_WG, S_WAVE = 2, 3
SRD_WS, SRD_1, SRD_2, SRD_3, SRD_4 = 4, 8, 12, 40, 44
P_X, P_WQKV, P_WO, P_W1, P_B1, P_W2, P_B2, P_GW, P_OUT, P_DBG, P_WS = 16, 18, 20, 24, 26, 28, 30, 32, 34, 36, 38
S_SPIN, S_TAG = 48, 49
S_VMASK = 50

LOG2E = 1.4426950408889634


def f32(x):
    import struct
    return "0x%08x" % struct.unpack("<I", struct.pack("<f", x))[0]


class Gen:
    def __init__(self, mega, prof=False):
        self.L = []
        self.prof = prof
        self.kid = 0
        self.mega = mega
        self.nlab = 0
        self.sc = " sc1" if mega else ""
        self.gprio = 0
        self.gpre = 10
        self.qchunks = 1
        self.arot = 0
        self.qlines = 4
        self.aprof = 0
        self.noloc = 0
        self.cpf = 1
        self.lnhold = 2
        self.qtest = 0
        self.qprof = 0
        self.tlb = 0
        self.qrot = 1
        self.scramble = 0
        self.cyc = False
        self.gstart = 13
        self.qfl = 2

    def __call__(self, s):
        for line in s.split("\n"):
            line = line.strip()
            if line:
                self.L.append("    " + line if not line.endswith(":") else line)

    def stamp(self, k, cyc=False):
        if self.prof and not (self.qprof and k > 0):
            self(f"{'s_memtime' if cyc else 's_memrealtime'} s[{84+2*k}:{85+2*k}]")

    def shstamp(self):
        for k in range(1, 7):
            self(f"s_mov_b32 s{84+2*k}, s{86+2*k}")
        self(("s_memtime" if self.qprof == 2 else "s_memrealtime") + " s[98:99]\ns_waitcnt lgkmcnt(0)")

    def end(self):
        if self.prof:
            self("s_waitcnt lgkmcnt(0)\nv_mov_b32 v1, 0")
            self(f"s_memrealtime s[100:101]\ns_waitcnt vmcnt(0) lgkmcnt(0)")
            for k in range(9):
                self(f"v_writelane_b32 v1, s{84+2*k}, {k}")
            self(f"""s_mul_i32 s52, s{S_WG}, 12
            s_add_u32 s52, s52, s{S_WAVE}
            s_lshl_b32 s52, s52, 6
            s_add_u32 s52, s52, {WS_STAMP + self.kid * 0x40000}
            v_lshlrev_b32 v2, 2, v0
            v_cmp_gt_u32 vcc, 16, v0
            s_and_saveexec_b64 s[54:55], vcc
            buffer_store_dword v1, v2, s[{SRD_WS}:{SRD_WS+3}], s52 offen""")
        self("s_endpgm")

    def lab(self, base="L"):
        self.nlab += 1
        return f"{base}_{self.nlab}"

    def srd(self, s, p, nbytes):
        self(f"s_mov_b32 s{s}, s{p}\ns_mov_b32 s{s+1}, s{p+1}\ns_mov_b32 s{s+2}, {nbytes}\ns_mov_b32 s{s+3}, 0x00020000")

    def signal(self, vsig, vtmp, val):
        self(f"v_mov_b32 v{vtmp}, {val}\nds_write_b32 v{vsig}, v{vtmp}")

    def wait(self, vpoll, vtmp, val, sleep=False):
        l0, l1 = self.lab("W"), self.lab("W")
        self(f"""{l0}:
        ds_read_b32 v{vtmp}, v{vpoll}
        s_waitcnt lgkmcnt(0)
        v_cmp_gt_u32 vcc, {val}, v{vtmp}
        s_cbranch_vccz {l1}
        {"s_sleep 2" if sleep else ""}
        s_sub_u32 s{S_SPIN}, s{S_SPIN}, 1
        s_cbranch_scc0 {l0}
        s_mov_b32 s{S_SPIN}, 0
        {l1}:""")

    def gwait(self, vaddr, vtmp, sleep=4, between=None, nvm=0):
        if not self.mega:
            return
        l0, l1 = self.lab("GW"), self.lab("GW")
        if between:
            self(f"buffer_load_dword v{vtmp}, v{vaddr}, s[{SRD_WS}:{SRD_WS+3}], 0 offen sc1")
            between()
            self(f"s_waitcnt vmcnt({nvm})\nv_cmp_ne_u32 vcc, s{S_TAG}, v{vtmp}\ns_cbranch_vccz {l1}")
        self(f"""{l0}:
        buffer_load_dword v{vtmp}, v{vaddr}, s[{SRD_WS}:{SRD_WS+3}], 0 offen sc1
        s_waitcnt vmcnt(0)
        v_cmp_ne_u32 vcc, s{S_TAG}, v{vtmp}
        s_cbranch_vccz {l1}
        s_sleep {sleep}
        s_sub_u32 s{S_SPIN}, s{S_SPIN}, 1
        s_cbranch_scc0 {l0}
        s_mov_b32 s{S_SPIN}, 0
        {l1}:""")

    def gsignal(self, soff, vtmp, vtmp2, val=S_TAG, vm=0, sc=" sc1"):
        if not self.mega:
            return
        self(f"""v_mov_b32 v{vtmp}, s{val}
        v_cmp_eq_u32 vcc, 0, v0
        v_mov_b32 v{vtmp2}, 0x7ffffff0
        s_nop 0
        v_cndmask_b32 v{vtmp2}, v{vtmp2}, 0, vcc
        s_waitcnt vmcnt({vm})
        buffer_store_dword v{vtmp}, v{vtmp2}, s[{SRD_WS}:{SRD_WS+3}], s{soff} offen{sc}""")

    def prologue(self, label, wave_off, exit_label):
        self(f""".p2align 8
        .type {label},@function
        {label}:
        s_load_dwordx16 s[16:31], s[0:1], 0
        s_load_dwordx8 s[32:39], s[0:1], 64
        s_cmp_ge_u32 s2, 256
        s_cbranch_scc1 {exit_label}""")
        if self.prof:
            for k in range(84, 102):
                self(f"s_mov_b32 s{k}, 0")
        self.stamp(0)
        if self.scramble == 2:
            self("s_lshr_b32 s52, s2, 3\ns_and_b32 s53, s52, 7\ns_xor_b32 s2, s2, s53\ns_lshr_b32 s52, s52, 3\ns_lshl_b32 s52, s52, 1\ns_xor_b32 s2, s2, s52")
        self(f"""v_lshrrev_b32 v1, 6, v0
        v_and_b32 v0, 63, v0
        s_mov_b32 s{S_SPIN}, 0x40000
        v_readfirstlane_b32 s{S_WAVE}, v1""")
        self("s_nop 1" if not wave_off else f"s_nop 1\ns_add_u32 s{S_WAVE}, s{S_WAVE}, {wave_off}")

    def args(self):
        self("s_waitcnt lgkmcnt(0)")
        if self.mega:
            self(f"""s_add_u32 s52, s{P_WS}, {WS_EPOCH}
            s_addc_u32 s53, s{P_WS+1}, 0
            s_load_dword s{S_TAG}, s[52:53], 0""")

    def clear_sync(self):
        l = self.lab("P")
        self(f"""s_cmp_lg_u32 s{S_WAVE}, 8
        s_cbranch_scc1 {l}
        v_lshlrev_b32 v2, 2, v0
        v_add_u32 v2, {LDS_SYNC}, v2
        v_mov_b32 v3, 0
        ds_write_b32 v2, v3
        {l}:""")

    def get_tag(self):
        self.srd(SRD_WS, P_WS, WS_SIZE)
        self("s_waitcnt lgkmcnt(0)")
        if self.mega:
            self(f"s_add_u32 s{S_TAG}, s{S_TAG}, 0x9E3779B9")
        self("s_barrier")

    def sync_regs(self, vsig, vpoll, first, count):
        self(f"""s_lshl_b32 s52, s{S_WAVE}, 2
        s_add_u32 s52, s52, {LDS_SYNC}
        v_mov_b32 v{vsig}, {OOB}
        v_mov_b32 v{vpoll}, s52
        v_cmp_eq_u32 vcc, 0, v0
        s_nop 1
        v_cndmask_b32 v{vsig}, v{vsig}, v{vpoll}, vcc
        v_and_b32 v{vpoll}, {count-1}, v0
        v_lshlrev_b32 v{vpoll}, 2, v{vpoll}
        v_add_u32 v{vpoll}, {LDS_SYNC + 4*first}, v{vpoll}""")

    def allreduce(self, regs, tmps, op="v_add_f32"):
        for sh in (1, 2, 4, 8):
            for r in regs:
                self(f"{op}_dpp v{r}, v{r}, v{r} row_ror:{sh} row_mask:0xf bank_mask:0xf")
            if len(regs) < 3:
                self("s_nop 1")
        for sw in ("v_permlane16_swap_b32", "v_permlane32_swap_b32"):
            for r, t in zip(regs, tmps):
                self(f"v_mov_b32 v{t}, v{r}")
            self("s_nop 1")
            for r, t in zip(regs, tmps):
                self(f"{sw} v{r}, v{t}")
            self("s_nop 1")
            for r, t in zip(regs, tmps):
                self(f"{op} v{r}, v{r}, v{t}")
            self("s_nop 1")

    VG_SIG, VG_POLL = 14, 15

    def ln_issue(self):
        self.clear_sync()
        self.args()
        self.srd(SRD_1, P_X, 2048 * 1024)
        self.srd(SRD_2, P_GW, 1024)
        self(f"""s_sub_u32 s54, s{S_WAVE}, 8
        s_and_b32 s79, s{S_WG}, 7
        s_lshl_b32 s79, s79, 5
        s_lshr_b32 s55, s{S_WG}, 3
        s_add_u32 s79, s79, s55
        s_lshl_b32 s55, s79, 3
        s_lshl1_add_u32 s55, s54, s55
        s_lshl_b32 s56, s55, 10
        v_lshlrev_b32 v1, 4, v0
        buffer_load_dwordx4 v[152:155], v1, s[{SRD_1}:{SRD_1+3}], s56 offen
        buffer_load_dwordx4 v[156:159], v1, s[{SRD_1}:{SRD_1+3}], s56 offen offset:1024
        buffer_load_dwordx4 v[160:163], v1, s[{SRD_2}:{SRD_2+3}], 0 offen""")

    def touch(self):
        l = [self.lab("T") for _ in range(4)]
        self(f"s_cmp_eq_u32 s54, 0\ns_cbranch_scc1 {l[0]}\ns_cmp_eq_u32 s54, 1\ns_cbranch_scc1 {l[1]}\ns_cmp_eq_u32 s54, 2\ns_cbranch_scc1 {l[2]}")
        self.srd(SRD_3, P_OUT, 2048 * 1024)
        self(f"s_branch {l[3]}\n{l[0]}:")
        self.srd(SRD_3, P_W1, 2048 * 3584)
        self(f"s_branch {l[3]}\n{l[1]}:")
        self.srd(SRD_3, P_W2, 1792 * 4096)
        self(f"s_branch {l[3]}\n{l[2]}:")
        self.srd(SRD_3, P_WO, 512 * 1024)
        self(f"""{l[3]}:
        v_lshlrev_b32 v2, 16, v0
        s_lshl_b32 s56, s54, 22
        s_mov_b32 s57, 0x400000
        buffer_load_dword v165, v2, s[{SRD_WS}:{SRD_WS+3}], s56 offen
        buffer_load_dword v166, v2, s[{SRD_3}:{SRD_3+3}], 0 offen
        buffer_load_dword v167, v2, s[{SRD_3}:{SRD_3+3}], s57 offen""")

    def ln(self, vm_after):
        X0, X1, GW, T = 88, 96, 104, 112
        self.get_tag()
        if self.mega:
            self.xcc_announce()
            self(f"s_cmp_eq_u32 s54, 1\ns_cbranch_scc1 LN_w1\ns_waitcnt vmcnt(0)\nLN_w1:")
            vm_after = 1
        self(f"s_waitcnt vmcnt({vm_after})")
        self.stamp(1)
        for (src, dst) in ((152, X0), (156, X1), (160, GW)):
            for i in range(4):
                self(f"v_lshlrev_b32 v{dst+2*i}, 16, v{src+i}\nv_and_b32 v{dst+2*i+1}, 0xffff0000, v{src+i}")
        s0, s1, d0, d1 = T, T + 1, T + 2, T + 3
        self(f"v_add_f32 v{s0}, v{X0}, v{X0+1}\nv_add_f32 v{s1}, v{X1}, v{X1+1}")
        self(f"v_mul_f32 v{d0}, v{X0}, v{GW}\nv_mul_f32 v{d1}, v{X1}, v{GW}")
        for i in range(2, 8):
            self(f"v_add_f32 v{s0}, v{s0}, v{X0+i}\nv_add_f32 v{s1}, v{s1}, v{X1+i}")
        for i in range(1, 8):
            self(f"v_fmac_f32 v{d0}, v{X0+i}, v{GW+i}\nv_fmac_f32 v{d1}, v{X1+i}, v{GW+i}")
        self("s_nop 1")
        self.allreduce([s0, s1, d0, d1], [T + 4, T + 5, T + 6, T + 7])
        self(f"v_mul_f32 v{s0}, {f32(1/512)}, v{s0}\nv_mul_f32 v{s1}, {f32(1/512)}, v{s1}")
        for i in range(8):
            self(f"v_sub_f32 v{X0+i}, v{X0+i}, v{s0}\nv_sub_f32 v{X1+i}, v{X1+i}, v{s1}")
        self(f"v_mul_f32 v{s0}, v{X0}, v{X0}\nv_mul_f32 v{s1}, v{X1}, v{X1}")
        for i in range(1, 8):
            self(f"v_fmac_f32 v{s0}, v{X0+i}, v{X0+i}\nv_fmac_f32 v{s1}, v{X1+i}, v{X1+i}")
        self("s_nop 1")
        self.allreduce([s0, s1], [T + 4, T + 5])
        self(f"""v_mov_b32 v{T+4}, {f32(1e-5)}
        v_fmac_f32 v{T+4}, {f32(1/512)}, v{s0}
        v_mov_b32 v{T+5}, {f32(1e-5)}
        v_fmac_f32 v{T+5}, {f32(1/512)}, v{s1}
        v_rsq_f32 v{s0}, v{T+4}
        v_rsq_f32 v{s1}, v{T+5}
        v_cmp_eq_u32 vcc, 0, v0
        v_mul_f32 v{d0}, {f32(-LOG2E)}, v{d0}
        v_mul_f32 v{d1}, {f32(-LOG2E)}, v{d1}
        v_cndmask_b32 v{d0}, v{d1}, v{d0}, vcc
        v_exp_f32 v{d0}, v{d0}""")
        for i in range(8):
            self(f"v_mul_f32 v{X0+i}, v{X0+i}, v{s0}\nv_mul_f32 v{X1+i}, v{X1+i}, v{s1}")
        self(f"v_add_f32 v{d0}, 1.0, v{d0}\nv_rcp_f32 v{d0}, v{d0}")
        for i in range(4):
            self(f"v_cvt_pk_bf16_f32 v{152+i}, v{X0+2*i}, v{X0+2*i+1}\nv_cvt_pk_bf16_f32 v{156+i}, v{X1+2*i}, v{X1+2*i+1}")
        self(f"""s_mul_i32 s56, s54, {2*LNP}
        s_add_u32 s56, s56, {LDS_LN}
        v_lshl_add_u32 v1, v0, 4, s56
        ds_write_b128 v1, v[152:155]
        ds_write_b128 v1, v[156:159] offset:{LNP}
        v_lshlrev_b32 v2, 2, v0
        v_cmp_gt_u32 vcc, 2, v0
        v_mov_b32 v3, 0x7ffffff0
        s_lshl_b32 s56, s55, 2
        v_cndmask_b32 v{T+8}, v3, v2, vcc
        s_add_u32 s59, s56, {WS_G}""")
        self.signal(self.VG_SIG, 3, 1)
        self(f"""v_bfe_u32 v1, v0, 2, 2
        v_mul_u32_u24 v1, {LNP}, v1
        v_lshrrev_b32 v2, 4, v0
        v_lshl_add_u32 v1, v2, 5, v1
        v_and_b32 v2, 3, v0
        v_lshl_add_u32 v1, v2, 3, v1
        s_lshl_b32 s56, s54, 8
        s_add_u32 s56, s56, {LDS_LN}
        v_add_u32 v1, s56, v1""")
        self.wait(self.VG_POLL, 3, 1)
        self(f"""ds_read_b64_tr_b16 v[152:153], v1
        ds_read_b64_tr_b16 v[154:155], v1 offset:{4*LNP}
        ds_read_b64_tr_b16 v[156:157], v1 offset:128
        ds_read_b64_tr_b16 v[158:159], v1 offset:{4*LNP+128}""")
        self(f"""v_lshrrev_b32 v1, 5, v0
        v_lshlrev_b32 v1, 17, v1
        v_and_b32 v2, 31, v0
        v_lshl_add_u32 v1, v2, 4, v1
        s_lshl_b32 s56, s54, 19
        s_lshr_b32 s57, s79, 1
        s_lshl_b32 s57, s57, 10
        s_add_u32 s56, s56, s57
        s_and_b32 s57, s79, 1
        s_lshl_b32 s57, s57, 9
        s_add_u32 s56, s56, s57
        s_add_u32 s56, s56, {WS_HT}
        s_add_u32 s57, s56, {2*128*1024}""")
        if self.lnhold:
            self.hold(self.lnhold)
        self(f"""s_waitcnt lgkmcnt(0)
        buffer_store_dword v{d0}, v{T+8}, s[{SRD_WS}:{SRD_WS+3}], s59 offen{self.sc}
        buffer_store_dwordx4 v[152:155], v1, s[{SRD_WS}:{SRD_WS+3}], s56 offen{self.sc}
        buffer_store_dwordx4 v[156:159], v1, s[{SRD_WS}:{SRD_WS+3}], s57 offen{self.sc}""")
        if self.mega:
            l = self.lab("LF")
            self("s_waitcnt vmcnt(0)")
            self.signal(self.VG_SIG, 3, 2)
            self(f"s_cmp_lg_u32 s54, 0\ns_cbranch_scc1 {l}\ns_lshl_b32 s56, s79, 7\ns_add_u32 s56, s56, {WS_FH}")
            self.wait(self.VG_POLL, 3, 2)
            self.gsignal(56, 2, 3)
            self(f"{l}:")
            self.xcc_decide()
            if self.qlines:
                self.hold(self.qlines)
                self.qkv_lines()

    def code_prefetch(self):
        if not self.cpf:
            return
        l = self.lab("CP")
        self(f"""s_cmp_ge_u32 s{S_WG}, 32
        s_cbranch_scc1 {l}
        s_getpc_b64 s[56:57]
        s_and_b32 s56, s56, 0xffffff00
        s_lshr_b32 s52, s{S_WG}, 3
        s_lshl2_add_u32 s52, s52, s{S_WAVE}
        s_lshl_b32 s52, s52, 11
        v_lshl_add_u32 v1, v0, 4, s52
        v_min_u32 v1, CODE_END-{l}-1024-16, v1
        global_load_dwordx4 v[160:163], v1, s[56:57]
        global_load_dwordx4 v[164:167], v1, s[56:57] offset:1024
        {l}:""")

    def qkv_map(self):
        self(f"""s_and_b32 s61, s{S_WG}, 7
        s_lshr_b32 s60, s{S_WG}, 3
        s_lshr_b32 s54, s60, 3
        s_lshl1_add_u32 s62, s54, s60
        s_add_u32 s62, s62, s61
        s_and_b32 s62, s62, 7""")

    VA_SIG, VA_POLL, VA_POLL2 = 104, 105, 106

    def qkv_loader(self):
        self.qkv_map()
        self(f"""s_sub_u32 s71, s{S_WAVE}, 4
        v_lshrrev_b32 v1, 3, v0
        v_and_b32 v2, 7, v0
        v_lshrrev_b32 v3, 4, v0
        v_xor_b32 v4, v2, v3
        v_xor_b32 v5, 4, v4
        v_lshlrev_b32 v4, 4, v4
        v_lshl_add_u32 v4, v1, 10, v4
        v_lshlrev_b32 v5, 4, v5
        v_lshl_add_u32 v5, v1, 10, v5
        v_add_u32 v5, {8192-1024}, v5
        v_and_b32 v3, 1, v3
        v_lshlrev_b32 v3, 1, v3
        v_xor_b32 v2, v2, v3
        v_mul_u32_u24 v6, 3072, v1
        v_lshl_add_u32 v6, v2, 4, v6
        v_xor_b32 v7, 64, v6
        v_add_u32 v7, {8*3072-1024}, v7
        s_lshl_b32 s66, s60, 16
        s_lshl_b32 s52, s71, 14
        s_add_u32 s66, s66, s52
        s_mul_i32 s68, s71, {16*3072}
        s_lshl_b32 s52, s61, 7
        s_add_u32 s68, s68, s52
        s_lshl_b32 s67, s71, 11
        s_mul_i32 s69, s71, 6144
        s_add_u32 s69, s69, 8192
        s_mov_b32 s72, 0
        s_lshl_b32 s52, s62, 7
        s_add_u32 s66, s66, s52
        s_mul_i32 s52, s62, {64*3072}
        s_add_u32 s68, s68, s52
        s_mov_b32 s{SRD_1+2}, {2048*1024}
        s_mov_b32 s{SRD_1+3}, 0x00020000
        s_mov_b32 s{SRD_2+2}, {512*3072}
        s_mov_b32 s{SRD_2+3}, 0x00020000""")
        self.args()
        self(f"s_mov_b64 s[{SRD_1}:{SRD_1+1}], s[{P_X}:{P_X+1}]\ns_mov_b64 s[{SRD_2}:{SRD_2+1}], s[{P_WQKV}:{P_WQKV+1}]")
        lp, nw, l, l2, l3 = (self.lab("QL") for _ in range(5))
        F = self.qfl
        self(f"""{lp}:
        s_cmp_lg_u32 s62, 8
        s_cbranch_scc1 {l}
        s_sub_u32 s66, s66, 1024
        s_sub_u32 s68, s68, {512*3072}
        {l}:
        s_add_u32 s62, s62, 1
        s_mov_b32 m0, s67
        s_add_u32 s67, s67, 32768
        buffer_load_dwordx4 v4, s[{SRD_1}:{SRD_1+3}], s66 offen lds
        buffer_load_dwordx4 v5, s[{SRD_1}:{SRD_1+3}], s66 offen offset:1024 lds
        s_mov_b32 m0, s69
        s_add_u32 s66, s66, 128
        buffer_load_dwordx4 v6, s[{SRD_2}:{SRD_2+3}], s68 offen lds
        buffer_load_dwordx4 v7, s[{SRD_2}:{SRD_2+3}], s68 offen offset:1024 lds
        s_add_u32 m0, s69, 1024
        s_and_b32 s67, s67, 0x1ffff
        buffer_load_dwordx4 v6, s[{SRD_2}:{SRD_2+3}], s68 offen offset:1024 lds
        buffer_load_dwordx4 v7, s[{SRD_2}:{SRD_2+3}], s68 offen offset:2048 lds
        s_add_u32 m0, s69, 2048
        s_add_u32 s69, s69, 32768
        buffer_load_dwordx4 v6, s[{SRD_2}:{SRD_2+3}], s68 offen offset:2048 lds
        buffer_load_dwordx4 v7, s[{SRD_2}:{SRD_2+3}], s68 offen offset:3072 lds
        s_and_b32 s69, s69, 0x1ffff
        s_add_u32 s68, s68, {64*3072}
        s_add_u32 s72, s72, 1
        s_cmp_lt_u32 s72, {F}
        s_cbranch_scc1 {lp}
        s_cmp_lg_u32 s72, {F}
        s_cbranch_scc1 {l2}""")
        self.sync_regs(self.VA_SIG, self.VA_POLL, 0, 4)
        self.get_tag()
        self(f"{l2}:\ns_sub_u32 s73, s72, {F - 1}\ns_waitcnt vmcnt({8 * (F - 1)})")
        self.signal(self.VA_SIG, 1, "s73")
        self(f"s_cmp_eq_u32 s72, 8\ns_cbranch_scc1 {l3}\ns_cmp_lt_u32 s72, 4\ns_cbranch_scc1 {lp}\ns_sub_u32 s73, s72, 3")
        self.wait(self.VA_POLL, 1, "s73")
        self(f"s_branch {lp}\n{l3}:")
        for k in range(F - 2, -1, -1):
            self(f"s_waitcnt vmcnt({8 * k})")
            self.signal(self.VA_SIG, 1, 8 - k if k else 10)
        self.stamp(2)
        self.srd(SRD_WS, P_WS, WS_SIZE)

    def qkv_compute(self):
        XA, WA = 4, 6
        FR = [8, 36]
        AQ, AK, AV = 108, 124, 140
        self.qkv_map()
        self(f"""v_and_b32 v1, 15, v0
        v_lshrrev_b32 v2, 4, v0
        v_bfe_u32 v3, v0, 1, 3
        v_xor_b32 v3, v3, v2
        v_lshlrev_b32 v3, 4, v3
        v_lshl_add_u32 v{XA}, v1, 7, v3
        v_xor_b32 v{XA+1}, 64, v{XA}
        v_bfe_u32 v1, v0, 2, 2
        v_bfe_u32 v3, v0, 4, 1
        v_lshl_add_u32 v7, v3, 3, v1
        v_lshlrev_b32 v{WA}, 7, v7
        v_lshrrev_b32 v1, 1, v1
        v_lshl_or_b32 v1, v3, 1, v1
        v_xor_b32 v1, s{S_WAVE}, v1
        v_lshl_add_u32 v{WA}, v1, 5, v{WA}
        v_and_b32 v1, 3, v0
        v_lshl_add_u32 v{WA}, v1, 3, v{WA}
        v_lshrrev_b32 v1, 5, v0
        v_mul_u32_u24 v1, 6144, v1
        v_add_u32 v{WA}, v1, v{WA}
        v_add_u32 v{WA}, 8192, v{WA}""")
        for i in range(48):
            self(f"v_mov_b32 v{AQ+i}, 0")
        self.sync_regs(self.VA_SIG, self.VA_POLL, 4, 4)
        self.args()
        self.code_prefetch()
        self.get_tag()

        def rd(ks):
            f = FR[ks]
            L = []
            for p in range(3):
                o = ks * 12288 + p * 2048
                L.append(f"ds_read_b128 v[{f+4*p}:{f+4*p+3}], v{XA+ks} offset:{p*2048}")
                L.append(f"ds_read_b64_tr_b16 v[{f+16+4*p}:{f+17+4*p}], v{WA} offset:{o}")
                L.append(f"ds_read_b64_tr_b16 v[{f+18+4*p}:{f+19+4*p}], v{WA} offset:{o+512}")
            L.append(f"ds_read_b128 v[{f+12}:{f+15}], v{XA+ks} offset:{3*2048}")
            return L

        def mm(ks, fill=()):
            f = FR[ks]
            fill = list(fill)
            n = 0
            for t in range(4):
                x = f + 4 * t
                for m in (f"v_mfma_f32_16x16x32_bf16 v[{AQ+4*t}:{AQ+4*t+3}], v[{f+16}:{f+19}], v[{x}:{x+3}], v[{AQ+4*t}:{AQ+4*t+3}]",
                          f"v_mfma_f32_16x16x32_bf16 v[{AK+4*t}:{AK+4*t+3}], v[{f+20}:{f+23}], v[{x}:{x+3}], v[{AK+4*t}:{AK+4*t+3}]",
                          f"v_mfma_f32_16x16x32_bf16 v[{AV+4*t}:{AV+4*t+3}], v[{x}:{x+3}], v[{f+24}:{f+27}], v[{AV+4*t}:{AV+4*t+3}]"):
                    self(m)
                    n += 1
                    k = (2 if n <= 5 else 1) if n < 12 else len(fill)
                    for y in fill[:k]:
                        self(y)
                    fill = fill[k:]

        self("s_mov_b32 s72, 1")
        self.wait(self.VA_POLL, 1, 1)
        self.stamp(1)
        if self.qtest: self.stamp(3, True)
        for x in rd(0):
            self(x)
        l, slow, lend = self.lab("QC"), self.lab("QC"), self.lab("QC")
        self(f"{l}:\nv_mov_b32 v1, s72\ns_waitcnt lgkmcnt(0)")
        adv1 = [f"""s_mov_b32 s52, 32768
        s_cmp_eq_u32 s72, 4
        s_cselect_b32 s52, {(-98304) & 0xffffffff}, s52
        s_add_u32 s72, s72, 1
        s_min_u32 s63, s72, 8"""] + [f"v_add_u32 v{r}, s52, v{r}" for r in (XA, XA + 1, WA)]
        mm(0, rd(1) + [f"ds_write_b32 v{self.VA_SIG}, v1", f"ds_read_b32 v2, v{self.VA_POLL}"] + adv1)
        self(f"s_waitcnt lgkmcnt(0)\nv_cmp_gt_u32 vcc, s63, v2\ns_cbranch_vccnz {slow}")
        mm(1, rd(0))
        self(f"s_cmp_le_u32 s72, 8\ns_cbranch_scc1 {l}\ns_branch {lend}\n{slow}:")
        mm(1)
        self.wait(self.VA_POLL, 2, "s63")
        for x in rd(0):
            self(x)
        self(f"s_branch {l}\n{lend}:")
        if self.qtest: self.stamp(4, True)
        self.stamp(2)
        if self.qtest: self.stamp(5, True)
        c = 0.25 * LOG2E
        self(f"""s_lshl2_add_u32 s67, s61, s{S_WAVE}
        s_lshl_b32 s68, s67, 5
        s_add_u32 s66, s68, s60
        s_lshl_b32 s69, s66, 11
        s_lshl_b32 s68, s66, 12
        s_add_u32 s68, s68, {WS_KV}
        v_lshlrev_b32 v4, 4, v0
        v_and_b32 v1, 15, v0
        v_lshlrev_b32 v6, 4, v1
        v_bfe_u32 v1, v0, 4, 1
        v_lshl_add_u32 v6, v1, 9, v6
        v_lshrrev_b32 v1, 5, v0
        v_lshl_add_u32 v6, v1, 8, v6
        s_mov_b32 s52, {f32(c)}
        s_mov_b32 s53, s52""")
        E = 64

        def pack(acc, dst):
            for b in range(2):
                d = dst + 4 * b
                for h in range(2):
                    t = acc + 8 * b + 4 * h
                    self(f"v_cvt_pk_bf16_f32 v{d+2*h}, v{t}, v{t+1}\nv_cvt_pk_bf16_f32 v{d+2*h+1}, v{t+2}, v{t+3}")
            self("s_nop 0")
            for b in range(2):
                d = dst + 4 * b
                self(f"v_permlane16_swap_b32 v{d}, v{d+2}\nv_permlane16_swap_b32 v{d+1}, v{d+3}")

        pack(AK, E)
        pack(AV, E + 8)
        for i in range(8):
            self(f"v_pk_mul_f32 v[{AQ+2*i}:{AQ+2*i+1}], v[{AQ+2*i}:{AQ+2*i+1}], s[52:53]")
        pack(AQ, E + 16)

        def stores(sc):
            self(f"""buffer_store_dwordx4 v[{E}:{E+3}], v4, s[{SRD_WS}:{SRD_WS+3}], s68 offen{sc}
            buffer_store_dwordx4 v[{E+4}:{E+7}], v4, s[{SRD_WS}:{SRD_WS+3}], s68 offen offset:2048{sc}
            buffer_store_dwordx4 v[{E+8}:{E+11}], v6, s[{SRD_WS}:{SRD_WS+3}], s68 offen offset:1024{sc}
            buffer_store_dwordx4 v[{E+12}:{E+15}], v6, s[{SRD_WS}:{SRD_WS+3}], s68 offen offset:3072{sc}
            buffer_store_dwordx4 v[{E+16}:{E+19}], v4, s[{SRD_WS}:{SRD_WS+3}], s69 offen{sc}
            buffer_store_dwordx4 v[{E+20}:{E+23}], v4, s[{SRD_WS}:{SRD_WS+3}], s69 offen offset:1024{sc}""")
            self.gsignal(52, 1, 2, sc=sc)

        if self.mega:
            far, done = self.lab("QF"), self.lab("QF")
            self(f"s_lshl_b32 s52, s66, 7\ns_add_u32 s52, s52, {WS_FQ}\nv_mov_b32 v3, {LDS_SYNC + 48}")
            self.wait(3, 2, 1)
            self(f"v_cmp_ne_u32 vcc, 1, v2\ns_cbranch_vccnz {far}")
            stores("")
            self(f"s_branch {done}\n{far}:")
            stores(" sc1")
            self(f"{done}:")
        else:
            stores("")
        self.signal(self.VA_SIG, 1, 10)
        self("s_waitcnt lgkmcnt(0)")

    def attention(self):
        Q, KB, VB, P2, S, O, NM = 4, [8, 12], [16, 24], 32, [40, 56], 72, 88
        VSIG, VPOLL, VK, VV, VKN, VVN, VD, VIDX, VT, VGT = 104, 105, 107, 108, 109, 110, 111, 112, 113, 114
        NS = 3
        sc = self.sc
        self(f"""s_and_b32 s52, s{S_WG}, 7
        s_lshr_b32 s53, s{S_WG}, 3
        s_and_b32 s60, s53, 3
        s_lshl2_add_u32 s60, s52, s60
        s_lshr_b32 s61, s53, 2
        s_lshl3_add_u32 s66, s61, s{S_WAVE}
        s_lshl_b32 s63, s60, 17
        s_add_u32 s63, s63, {WS_KV}
        s_lshl_b32 s52, s{S_WAVE}, 11
        s_add_u32 s67, s63, s52
        s_mov_b32 s62, {'s61' if self.arot else 0}
        v_lshlrev_b32 v{VD}, 4, v0
        s_lshl_b32 s68, s60, 6
        s_add_u32 s68, s68, s66
        s_lshl_b32 s68, s68, 10""")
        self.sync_regs(VSIG, VPOLL, 0, 8)
        base = 0
        self(f"""v_and_b32 v1, 31, v0
        v_lshlrev_b32 v{VGT}, 2, v1
        s_lshl_b32 s70, s66, 7
        s_add_u32 s70, s70, {WS_G}""")
        if self.mega:
            base = 11
            lw, lj = self.lab("AW"), self.lab("AW")
            self.stamp(3)
            self(f"""s_cmp_eq_u32 s{S_WAVE}, 7
            s_cbranch_scc0 {lw}
            s_lshl_b32 s52, s60, 12
            s_add_u32 s52, s52, {WS_FQ}
            s_lshl_b32 s53, s61, 12
            s_add_u32 s53, s53, {WS_FH - 4096}
            v_mov_b32 v1, s52
            v_mov_b32 v2, s53
            v_cmp_gt_u32 vcc, 32, v0
            s_nop 1
            v_cndmask_b32 v1, v2, v1, vcc
            v_lshl_add_u32 v1, v0, 7, v1""")
            self.gwait(1, 2, sleep=1)
            self.wait(VPOLL, 2, 10)
            self.signal(VSIG, 2, 11)
            self(f"s_branch {lj}\n{lw}:\nv_mov_b32 v1, {LDS_SYNC + 28}")
            self.wait(1, 2, 11, sleep=True)
            self(f"{lj}:")
            self.stamp(4)
        self(f"buffer_load_dwordx4 v[{Q}:{Q+3}], v{VD}, s[{SRD_WS}:{SRD_WS+3}], s68 offen{sc}")

        def dma():
            self(f"""s_lshl_b32 s52, s62, 14
            s_mov_b32 m0, s69
            s_add_u32 s52, s52, s67
            buffer_load_dwordx4 v{VD}, s[{SRD_WS}:{SRD_WS+3}], s52 offen{sc} lds
            buffer_load_dwordx4 v{VD}, s[{SRD_WS}:{SRD_WS+3}], s52 offen offset:1024{sc} lds
            s_add_u32 s62, s62, 1
            s_and_b32 s62, s62, 7
            s_add_u32 s69, s69, 16384
            s_cmp_ge_u32 s69, {NS*16384}
            s_cselect_b32 s52, {NS*16384}, 0
            s_sub_u32 s69, s69, s52""")

        self(f"s_lshl_b32 s69, s{S_WAVE}, 11")
        dma()
        self(f"""v_mov_b32 v{VIDX}, 0xdddddddd
        v_mov_b32 v{VK}, v{VD}
        v_and_b32 v1, 15, v0
        v_lshlrev_b32 v1, 4, v1
        v_lshrrev_b32 v2, 5, v0
        v_lshl_add_u32 v{VV}, v2, 8, v1
        v_add_u32 v{VV}, 1024, v{VV}
        v_add_u32 v{VKN}, 16384, v{VK}
        v_add_u32 v{VVN}, 16384, v{VV}
        s_mov_b32 s{S_VMASK}, 0x0000ffff
        s_mov_b32 s{S_VMASK+1}, 0x0000ffff
        v_and_b32 v1, 31, v0
        v_cmp_eq_u32 vcc, 16, v1
        v_mov_b32 v2, 0x3f803f80
        s_nop 0
        v_cndmask_b32 v{VB[0]}, 0, v2, vcc""")
        for i in range(1, 16):
            self(f"v_mov_b32 v{VB[0]+i}, v{VB[0]}")
        for i in range(16):
            self(f"v_mov_b32 v{O+i}, 0")
        for i in range(8):
            self(f"v_mov_b32 v{P2+i}, 0")
        if self.aprof: self.stamp(1)
        self(f"s_waitcnt vmcnt(0)")
        if self.aprof: self.stamp(2)
        self.signal(VSIG, 1, base + 1)
        dma()
        self(f"buffer_load_dword v{VGT}, v{VGT}, s[{SRD_WS}:{SRD_WS+3}], s70 offen{sc}")
        self.wait(VPOLL, 1, base + 1)
        self.stamp(5)
        if self.cyc: self.stamp(1, True)
        self(f"""ds_read_b128 v[{KB[0]}:{KB[0]+3}], v{VK}
        ds_read_b128 v[{KB[1]}:{KB[1]+3}], v{VK} offset:2048
        s_mov_b64 exec, s[{S_VMASK}:{S_VMASK+1}]
        ds_read_b128 v[{VB[0]}:{VB[0]+3}], v{VV}
        ds_read_b128 v[{VB[0]+4}:{VB[0]+7}], v{VV} offset:512
        s_mov_b64 exec, -1
        s_waitcnt lgkmcnt(3)
        v_mfma_f32_32x32x16_bf16 v[{S[1]}:{S[1]+15}], v[{KB[0]}:{KB[0]+3}], v[{Q}:{Q+3}], 0
        s_mov_b32 s64, {base+2}
        s_mov_b32 s65, 0
        s_mov_b32 s71, 16384
        s_nop 9""")
        self.rowmax(S[1], NM)
        self(f"s_nop 1\nv_mfma_f32_32x32x16_bf16 v[{S[0]}:{S[0]+15}], v[{KB[0]}:{KB[0]+3}], v[{Q}:{Q+3}], v[{NM}:{NM+15}]\ns_nop 9")
        loop, slow, back, norefill = self.lab("AL"), self.lab("AS"), self.lab("AB"), self.lab("AN")
        if self.aprof: self.stamp(7)
        self(f".p2align 6\n{loop}:")
        for n in range(8):
            cur, nxt = S[n & 1], S[(n + 1) & 1]
            extra = 1 if n in (2, 4) else 0
            self("s_waitcnt lgkmcnt(2)")
            if n == 5:
                self(f"v_cmp_gt_u32 vcc, s64, v{VT}\ns_cbranch_vccnz {slow}\n{back}:")
            self(f"v_mfma_f32_32x32x16_bf16 v[{nxt}:{nxt+15}], v[{KB[(n+1)&1]}:{KB[(n+1)&1]+3}], v[{Q}:{Q+3}], v[{NM}:{NM+15}]")
            if n + 2 < 8:
                self(f"ds_read_b128 v[{KB[n&1]}:{KB[n&1]+3}], v{VK} offset:{(n+2)*2048}")
            else:
                self(f"ds_read_b128 v[{KB[n&1]}:{KB[n&1]+3}], v{VKN} offset:{(n+2-8)*2048}")
            if n == 2:
                self("s_waitcnt vmcnt(0)")
                self.signal(VSIG, VT, "s64")
            if n == 4:
                self(f"ds_read_b32 v{VT}, v{VPOLL}")
            for i in range(0, 4):
                self(f"v_exp_f32 v{cur+i}, v{cur+i}")
            vb = VB[(n + 1) & 1]
            self(f"v_smfmac_f32_32x32x32_bf16 v[{O}:{O+15}], v[{vb+4}:{vb+7}], v[{P2}:{P2+7}], v{VIDX}")
            va, off = (VV, (n + 1) * 2048) if n + 1 < 8 else (VVN, 0)
            self(f"""s_mov_b64 exec, s[{S_VMASK}:{S_VMASK+1}]
            ds_read_b128 v[{vb}:{vb+3}], v{va} offset:{off}
            ds_read_b128 v[{vb+4}:{vb+7}], v{va} offset:{off+512}
            s_mov_b64 exec, -1""")
            for i in range(4, 8):
                self(f"v_exp_f32 v{cur+i}, v{cur+i}")
            for i in range(8, 10):
                self(f"v_exp_f32 v{P2+i-8}, v{cur+i}")
            vb = VB[n & 1]
            self(f"s_waitcnt lgkmcnt({3+extra})")
            self(f"v_smfmac_f32_32x32x32_bf16 v[{O}:{O+15}], v[{vb}:{vb+3}], v[{cur}:{cur+7}], v{VIDX}")
            if n == 5:
                self(f"s_cmp_gt_u32 s65, 5\ns_cbranch_scc1 {norefill}")
                dma()
                self(f"{norefill}:")
            for i in range(10, 16):
                self(f"v_exp_f32 v{P2+i-8}, v{cur+i}")
            if n == 7:
                self(f"""v_mov_b32 v{VK}, v{VKN}
                v_mov_b32 v{VV}, v{VVN}
                s_add_u32 s53, s71, 16384
                s_cmp_eq_u32 s53, {NS*16384}
                s_cselect_b32 s53, 0, s53
                s_sub_u32 s52, s53, s71
                s_mov_b32 s71, s53
                v_add_u32 v{VKN}, s52, v{VKN}
                v_add_u32 v{VVN}, s52, v{VVN}
                s_add_u32 s64, s64, 1
                s_add_u32 s65, s65, 1
                s_cmp_lt_u32 s65, 8
                s_cbranch_scc1 {loop}""")
        self.stamp(6)
        if self.cyc: self.stamp(2, True)
        self(f"v_smfmac_f32_32x32x32_bf16 v[{O}:{O+15}], v[{VB[1]+4}:{VB[1]+7}], v[{P2}:{P2+7}], v{VIDX}")
        fin, fb = self.lab("AF"), self.lab("AR")
        self(f"""s_nop 11
        v_mov_b32 v1, v{O+8}
        v_mov_b32 v2, {f32(2.0**60)}
        s_movk_i32 s52, 0x207
        v_permlane32_swap_b32 v{O+8}, v1
        s_nop 1
        v_cmp_nle_f32 vcc, v{O+8}, v2""")
        for i in range(8):
            self(f"v_cmp_class_f32 s[54:55], v{O+i}, s52\ns_or_b64 vcc, vcc, s[54:55]")
        self(f"s_cbranch_vccnz {fb}\n{fin}:")
        self(f"""v_rcp_f32 v1, v{O+8}
        s_lshl_b32 s52, s66, 5
        s_add_u32 s52, s52, s60
        s_lshl_b32 s53, s52, 10
        s_add_u32 s53, s53, {WS_O}
        v_mul_f32 v1, v1, v{VGT}""")
        for i in range(8):
            self(f"v_mul_f32 v{O+i}, v{O+i}, v1")
        for i in range(4):
            self(f"v_cvt_pk_bf16_f32 v{Q+i}, v{O+2*i}, v{O+2*i+1}")
        self(f"buffer_store_dwordx4 v[{Q}:{Q+3}], v{VD}, s[{SRD_WS}:{SRD_WS+3}], s53 offen{sc}")
        if self.mega:
            self(f"s_lshl_b32 s52, s52, 7\ns_add_u32 s52, s52, {WS_FO}")
            self.gsignal(52, 1, 2)
        self.end()
        self(f"{slow}:")
        self.wait(VPOLL, VT, "s64")
        self(f"s_branch {back}")
        self(f"{fb}:\ns_waitcnt lgkmcnt(0)\nv_mov_b32 v{VK}, 0xff800000\ns_mov_b32 s65, 0\ns_mov_b32 s52, s63")
        l = self.lab("AR")
        self(f"""{l}:
        buffer_load_dwordx4 v[{KB[0]}:{KB[0]+3}], v{VD}, s[{SRD_WS}:{SRD_WS+3}], s52 offen{sc}
        s_waitcnt vmcnt(0)
        v_mfma_f32_32x32x16_bf16 v[{S[0]}:{S[0]+15}], v[{KB[0]}:{KB[0]+3}], v[{Q}:{Q+3}], 0
        s_nop 15""")
        for i in range(8):
            self(f"v_max3_f32 v{VK}, v{S[0]+2*i}, v{S[0]+2*i+1}, v{VK}")
        self(f"""s_add_u32 s52, s52, 2048
        s_add_u32 s65, s65, 1
        s_cmp_lt_u32 s65, 64
        s_cbranch_scc1 {l}
        v_mov_b32 v1, v{VK}
        s_nop 1
        v_permlane32_swap_b32 v{VK}, v1
        s_nop 1
        v_max_f32 v1, v1, v{VK}""")
        for i in range(16):
            self(f"v_sub_f32 v{NM+i}, 0, v1\nv_mov_b32 v{O+i}, 0")
        self(f"""v_and_b32 v1, 15, v0
        v_lshlrev_b32 v1, 4, v1
        v_lshrrev_b32 v2, 5, v0
        v_lshl_add_u32 v{VV}, v2, 8, v1
        s_mov_b32 s65, 0
        s_mov_b32 s52, s63""")
        l = self.lab("AR")
        self(f"""{l}:
        buffer_load_dwordx4 v[{KB[0]}:{KB[0]+3}], v{VD}, s[{SRD_WS}:{SRD_WS+3}], s52 offen{sc}
        s_mov_b64 exec, s[{S_VMASK}:{S_VMASK+1}]
        buffer_load_dwordx4 v[{VB[0]}:{VB[0]+3}], v{VV}, s[{SRD_WS}:{SRD_WS+3}], s52 offen offset:1024{sc}
        buffer_load_dwordx4 v[{VB[0]+4}:{VB[0]+7}], v{VV}, s[{SRD_WS}:{SRD_WS+3}], s52 offen offset:1536{sc}
        s_mov_b64 exec, -1
        s_waitcnt vmcnt(0)
        v_mfma_f32_32x32x16_bf16 v[{S[0]}:{S[0]+15}], v[{KB[0]}:{KB[0]+3}], v[{Q}:{Q+3}], v[{NM}:{NM+15}]
        s_nop 15""")
        for i in range(16):
            self(f"v_exp_f32 v{S[0]+i}, v{S[0]+i}")
        self(f"""s_nop 1
        v_smfmac_f32_32x32x32_bf16 v[{O}:{O+15}], v[{VB[0]}:{VB[0]+3}], v[{S[0]}:{S[0]+7}], v{VIDX}
        v_smfmac_f32_32x32x32_bf16 v[{O}:{O+15}], v[{VB[0]+4}:{VB[0]+7}], v[{S[0]+8}:{S[0]+15}], v{VIDX}
        s_add_u32 s52, s52, 2048
        s_add_u32 s65, s65, 1
        s_cmp_lt_u32 s65, 64
        s_cbranch_scc1 {l}
        s_nop 15
        v_mov_b32 v1, v{O+8}
        s_nop 1
        v_permlane32_swap_b32 v{O+8}, v1
        s_nop 1
        s_branch {fin}""")

    def rowmax(self, s, nm):
        self(f"v_max3_f32 v1, v{s}, v{s+1}, v{s+2}\nv_max3_f32 v2, v{s+3}, v{s+4}, v{s+5}")
        for i in range(6, 14, 4):
            self(f"v_max3_f32 v1, v{s+i}, v{s+i+1}, v1\nv_max3_f32 v2, v{s+i+2}, v{s+i+3}, v2")
        self(f"""v_max3_f32 v1, v{s+14}, v{s+15}, v1
        v_max_f32 v1, v1, v2
        v_mov_b32 v2, v1
        s_nop 1
        v_permlane32_swap_b32 v1, v2
        s_nop 1
        v_max_f32 v1, v1, v2""")
        for i in range(16):
            self(f"v_sub_f32 v{nm+i}, 0, v1")

    TB = [16, 24]
    FB = 32
    ACC = 88
    VTD, VTR0, VTR1, VFD, VTD2 = 4, 5, 6, 7, 164

    def g_setup(self, pitch, swapped, tbit):
        self(f"""v_lshrrev_b32 v1, 3, v0
        v_and_b32 v2, 7, v0
        v_bfe_u32 v3, v0, 4, 1
        v_lshlrev_b32 v3, 2, v3
        v_xor_b32 v2, v2, v3
        v_mul_u32_u24 v{self.VTD}, {pitch}, v1
        v_lshl_add_u32 v{self.VTD}, v2, 4, v{self.VTD}
        v_add_u32 v{self.VTD2}, {8*pitch-1024}, v{self.VTD}
        v_lshlrev_b32 v{self.VFD}, 4, v0
        v_bfe_u32 v1, v0, 2, 2
        v_lshrrev_b32 v2, 5, v0
        v_lshl_add_u32 v3, v2, {2 if swapped else 3}, v1
        v_lshlrev_b32 v3, 7, v3
        v_lshrrev_b32 v1, 1, v1
        s_bfe_u32 s52, s54, {0x10000 | tbit}
        v_xor_b32 v1, s52, v1
        v_lshl_add_u32 v3, v1, 6, v3
        v_bfe_u32 v1, v0, 4, 1
        v_lshl_add_u32 v3, v1, 5, v3
        v_and_b32 v1, 3, v0
        v_lshl_add_u32 v3, v1, 3, v3
        s_mul_i32 s58, s54, {GRING}
        s_add_u32 s58, s58, {LDS_G}
        v_add_u32 v{self.VTR0}, s58, v3
        v_xor_b32 v{self.VTR1}, 64, v{self.VTR0}""")

    def g_T(self, i, n, srdT, pitch):
        slot = i % R
        return [f"""s_mul_i32 s52, s74, {16*pitch}
        s_add_u32 m0, s58, {slot*2048}
        s_add_u32 s52, s52, s76
        buffer_load_dwordx4 v{self.VTD}, s[{srdT}:{srdT+3}], s52 offen lds""",
        f"""buffer_load_dwordx4 v{self.VTD2}, s[{srdT}:{srdT+3}], s52 offen offset:1024 lds
        s_add_u32 s74, s74, 1
        s_cmp_eq_u32 s74, {n}
        s_cselect_b32 s74, 0, s74"""]

    def g_F(self, i, n):
        f = self.FB + (i % R) * 8
        return [f"""s_lshl_b32 s53, s75, 10
        s_add_u32 s59, s53, s77
        buffer_load_dwordx4 v[{f}:{f+3}], v{self.VFD}, s[{SRD_WS}:{SRD_WS+3}], s59 offen{self.sc}""",
        f"""s_add_u32 s59, s53, s78
        buffer_load_dwordx4 v[{f+4}:{f+7}], v{self.VFD}, s[{SRD_WS}:{SRD_WS+3}], s59 offen{self.sc}
        s_add_u32 s75, s75, 1
        s_cmp_eq_u32 s75, {n}
        s_cselect_b32 s75, 0, s75"""]

    def g_issue_T(self, i, n, srdT, pitch):
        for x in self.g_T(i, n, srdT, pitch):
            self(x)

    def g_reads(self, i, swapped):
        t = self.TB[i & 1]
        o = (i % R) * 2048
        d = 1024 if swapped else 512
        self(f"""ds_read_b64_tr_b16 v[{t}:{t+1}], v{self.VTR0} offset:{o}
        ds_read_b64_tr_b16 v[{t+2}:{t+3}], v{self.VTR0} offset:{o+d}
        ds_read_b64_tr_b16 v[{t+4}:{t+5}], v{self.VTR1} offset:{o}
        ds_read_b64_tr_b16 v[{t+6}:{t+7}], v{self.VTR1} offset:{o+d}""")

    def g_mm(self, i, kind, first, q):
        t = self.TB[i & 1]
        f = self.FB + (i % R) * 8
        a = self.ACC + 16 * q
        c = "0" if first else f"v[{a}:{a+15}]"
        if kind == "g1":
            A, B = t + 4 * (q & 1), f + 4 * (q >> 1)
        elif kind == "g2":
            A, B = f + 4 * (q >> 1), t + 4 * (q & 1)
        else:
            A, B = t + 4 * (q >> 1), f + 4 * (q & 1)
        self(f"v_mfma_f32_32x32x16_bf16 v[{a}:{a+15}], v[{A}:{A+3}], v[{B}:{B+3}], {c}")

    def g_pass(self, n, kind, srdT, pitch, swapped, zero_first, t_pre=0, dist=D, extra={}, f_pre=0):
        order = []

        def wait_for(step):
            last = max(k for k, s in enumerate(order) if s <= step)
            self(f"s_waitcnt vmcnt({min(len(order) - 1 - last, 63)})")

        order += [s for s in range(t_pre) for _ in range(2)]
        for i in range(min(dist, n)):
            for x in ([] if i < t_pre else self.g_T(i, n, srdT, pitch)) + ([] if i < f_pre else self.g_F(i, n)):
                self(x); order.append(i)
        wait_for(0)
        self.g_reads(0, swapped)
        for i in range(n):
            j = i + dist if dist < R else i + dist - 1
            ops = []
            if j < n and j >= dist:
                ops = ([] if j < t_pre else self.g_T(j, n, srdT, pitch)) + self.g_F(j, n)
            z = zero_first and i == 0
            self("s_waitcnt lgkmcnt(0)")
            self.g_mm(i, kind, z, 0)
            if i + 1 < n:
                wait_for(i + 1)
                self.g_reads(i + 1, swapped)
            self.g_mm(i, kind, z, 1)
            for q, k in ((2, 1), (3, 2), (None, 1)):
                for _ in range(k):
                    if ops:
                        self(ops.pop(0)); order.append(j)
                if q is not None:
                    self.g_mm(i, kind, z, q)
            for x in extra.get(i, ()):
                self(x); order.append(j)

    def g_reduce(self, sigval):
        A = self.ACC
        self(f"s_setprio 3\nv_lshl_add_u32 v1, v0, 4, s58\ns_nop 10")
        for t in range(1, 4):
            for k in range(4):
                r = A + 16 * t + 4 * k
                self(f"ds_write_b128 v1, v[{r}:{r+3}] offset:{(t-1)*4096 + k*1024}")
        self.signal(self.VG_SIG, 2, sigval)
        for t in range(1, 4):
            self(f"""s_xor_b32 s52, s54, {t}
            s_mul_i32 s52, s52, {GRING}
            s_add_u32 s52, s52, {LDS_G + (t-1)*4096}
            v_lshl_add_u32 v{7+t}, v0, 4, s52""")
        self.wait(self.VG_POLL, 2, sigval)
        for t in range(1, 4):
            for k in range(4):
                r = A + 16 * t + 4 * k
                self(f"ds_read_b128 v[{r}:{r+3}], v{7+t} offset:{k*1024}")
        self.signal(self.VG_SIG, 2, sigval + 1)
        for t in range(1, 4):
            self(f"s_waitcnt lgkmcnt({(3-t)*4+1})")
            for k in range(16):
                self(f"v_add_f32 v{A+k}, v{A+k}, v{A+16*t+k}")

    def hold(self, val):
        self(f"v_and_b32 v2, 3, v0\nv_lshlrev_b32 v2, 2, v2\nv_add_u32 v2, {LDS_SYNC + 16}, v2")
        self.wait(2, 3, val, sleep=True)

    def xcc_announce(self):
        l = self.lab("XA")
        self(f"""s_cmp_lg_u32 s54, 1
        s_cbranch_scc1 {l}
        s_getreg_b32 s52, hwreg(HW_REG_XCC_ID, 0, 4)
        s_add_u32 s52, s52, s{S_TAG}
        s_lshl_b32 s53, s79, 7
        s_add_u32 s53, s53, {WS_FX}""")
        self.gsignal(53, 2, 3, val=52, vm=63)
        self(f"{l}:")

    def xcc_decide(self):
        l, p0, p1 = self.lab("XD"), self.lab("XD"), self.lab("XD")
        self(f"""s_cmp_lg_u32 s54, 1
        s_cbranch_scc1 {l}
        s_and_b32 s52, s79, 0xe0
        s_lshl_b32 s52, s52, 7
        s_add_u32 s52, s52, {WS_FX}
        v_and_b32 v1, 31, v0
        v_lshl_add_u32 v1, v1, 7, s52
        s_getreg_b32 s53, hwreg(HW_REG_XCC_ID, 0, 4)
        {p0}:
        buffer_load_dword v2, v1, s[{SRD_WS}:{SRD_WS+3}], 0 offen sc1
        s_waitcnt vmcnt(0)
        v_subrev_u32 v2, s{S_TAG}, v2
        v_cmp_lt_u32 vcc, 15, v2
        s_cbranch_vccz {p1}
        s_sleep 4
        s_sub_u32 s{S_SPIN}, s{S_SPIN}, 1
        s_cbranch_scc0 {p0}
        s_mov_b32 s{S_SPIN}, 0
        {p1}:
        v_cmp_ne_u32 vcc, s53, v2
        s_cmp_eq_u64 vcc, 0
        s_cselect_b32 s52, {1 if not self.noloc else 2}, 2
        v_mov_b32 v1, {LDS_SYNC + 48}
        v_mov_b32 v2, s52
        ds_write_b32 v1, v2
        {l}:""")

    def qkv_lines(self):
        l = self.lab("QL")
        self(f"""s_and_b32 s52, s{S_WG}, 7
        s_lshl2_add_u32 s52, s52, s54
        s_lshl_b32 s52, s52, 5
        s_lshr_b32 s53, s{S_WG}, 3
        s_add_u32 s52, s52, s53
        s_lshl_b32 s56, s52, 11
        s_lshl_b32 s57, s52, 12
        s_add_u32 s57, s57, {WS_KV}
        v_lshlrev_b32 v3, 4, v0
        buffer_load_dwordx4 v[128:131], v3, s[{SRD_WS}:{SRD_WS+3}], s56 offen sc1
        buffer_load_dwordx4 v[132:135], v3, s[{SRD_WS}:{SRD_WS+3}], s56 offen offset:1024 sc1
        s_cmp_ge_u32 s53, {self.qchunks * 4}
        s_cbranch_scc1 {l}""")
        for k in range(4):
            self(f"buffer_load_dwordx4 v[{136+4*k}:{139+4*k}], v3, s[{SRD_WS}:{SRD_WS+3}], s57 offen offset:{k*1024} sc1")
        self(f"{l}:")

    def g_start(self):
        self(f"""v_and_b32 v1, 3, v0
        v_lshlrev_b32 v1, 2, v1
        v_add_u32 v1, {LDS_SYNC}, v1""")
        self.wait(1, 2, 10, sleep=True)
        if self.gstart > 10:
            l0, l1 = self.lab("GS"), self.lab("GS")
            self(f"""v_mov_b32 v1, {LDS_SYNC + 28}
            s_mov_b32 s52, 24
            {l0}:
            ds_read_b32 v2, v1
            s_waitcnt lgkmcnt(0)
            v_cmp_gt_u32 vcc, {self.gstart}, v2
            s_cbranch_vccz {l1}
            s_sleep 2
            s_sub_u32 s52, s52, 1
            s_cbranch_scc0 {l0}
            {l1}:""")

    def gate_loads(self, check=True):
        self.srd(SRD_1, P_B2, 4096)
        self(f"""s_and_b32 s52, s{S_WG}, 7
        s_lshr_b32 s53, s{S_WG}, 3
        s_and_b32 s53, s53, 3
        s_lshl2_add_u32 s60, s52, s53
        s_and_b32 s52, s54, 1
        s_lshl1_add_u32 s61, s60, s52""")
        if self.mega and check:
            self(f"""v_and_b32 v1, 7, v0
            s_lshl_b32 s52, s60, 10
            s_add_u32 s52, s52, {WS_FH}
            v_lshl_add_u32 v1, v1, 7, s52""")
            self.gwait(1, 2, sleep=8)
        self(f"""v_and_b32 v1, 31, v0
        v_lshlrev_b32 v2, 2, v1
        v_lshlrev_b32 v1, 1, v1
        s_lshl_b32 s52, s61, 7
        s_add_u32 s52, s52, {WS_G}
        s_xor_b32 s53, s52, 128
        buffer_load_dword v11, v2, s[{SRD_WS}:{SRD_WS+3}], s52 offen{self.sc}
        buffer_load_dword v12, v2, s[{SRD_WS}:{SRD_WS+3}], s53 offen{self.sc}
        s_lshl_b32 s52, s61, 6
        buffer_load_ushort v13, v1, s[{SRD_1}:{SRD_1+3}], s52 offen""")

    def g1_map(self):
        self(f"""s_sub_u32 s54, s{S_WAVE}, 8
        s_and_b32 s52, s{S_WG}, 7
        s_lshr_b32 s82, s{S_WG}, 3
        s_and_b32 s53, s52, 1
        s_mul_i32 s53, s53, 28
        s_add_u32 s53, s53, s82
        s_lshr_b32 s52, s52, 1
        s_mul_i32 s80, s52, 7
        s_lshr_b32 s52, s53, 3
        s_add_u32 s80, s80, s52
        s_and_b32 s81, s53, 7""")

    def g1_setup(self):
        self.srd(SRD_3, P_W1, 2048 * 3584)
        self.srd(SRD_4, P_B1, 3584)
        self.g_setup(3584, False, 0)
        self(f"""s_lshl2_add_u32 s74, s81, s80
        s_and_b32 s74, s74, 31
        s_mov_b32 s75, s74
        s_mul_i32 s76, s54, {512*3584}
        s_lshl_b32 s52, s80, 7
        s_add_u32 s76, s76, s52
        s_lshr_b32 s52, s54, 1
        s_lshl1_add_u32 s52, s81, s52
        s_lshl_b32 s77, s52, 17
        s_lshl_b32 s53, s54, 15
        s_add_u32 s77, s77, s53
        s_add_u32 s77, s77, {WS_HT}
        s_xor_b32 s78, s77, {1 << 17}""")

    def g1_main(self, sig0):
        A = self.ACC
        t_pre = 0
        if self.mega:
            self.g_start()
            self.stamp(2)
            self(f"""s_lshl_b32 s52, s54, 13
            s_add_u32 s52, s52, {WS_FH}
            v_lshl_add_u32 v1, v0, 7, s52""")
            t_pre = D
            self.gwait(1, 2, sleep=8, between=lambda: [self.g_issue_T(i, 32, SRD_3, 3584) for i in range(D)], nvm=2 * D)
        self.stamp(3)
        self(f"s_setprio {self.gprio}")
        self.g_pass(32, "g1", SRD_3, 3584, False, True, t_pre=t_pre)
        self.stamp(4)
        self(f"""v_lshrrev_b32 v1, 5, v0
        v_lshlrev_b32 v1, 3, v1
        s_and_b32 s53, s54, 1
        s_lshl1_add_u32 s83, s80, s53
        s_lshl_b32 s52, s83, 6""")
        for g in range(4):
            self(f"buffer_load_dwordx2 v[{16+2*g}:{17+2*g}], v1, s[{SRD_4}:{SRD_4+3}], s52 offen offset:{16*g}")
        self.g_reduce(sig0 + 1)
        self("s_waitcnt vmcnt(0)")
        if self.mega:
            self.gate_loads(False)
        k0 = -2.0 * math.sqrt(2.0 / math.pi) * LOG2E
        k1 = k0 * 0.044715
        self(f"s_mov_b32 s52, {f32(k1)}\nv_mov_b32 v3, {f32(k0)}")
        T = A + 16
        for k in range(16):
            src = 16 + k // 2
            if k & 1:
                self(f"v_and_b32 v{T+k}, 0xffff0000, v{src}")
            else:
                self(f"v_lshlrev_b32 v{T+k}, 16, v{src}")
        for k in range(16):
            self(f"v_add_f32 v{A+k}, v{A+k}, v{T+k}")
        for k in range(16):
            self(f"v_mul_f32 v{T+k}, v{A+k}, v{A+k}")
        for k in range(16):
            self(f"v_fma_f32 v{T+k}, v{T+k}, s52, v3")
        for k in range(16):
            self(f"v_mul_f32 v{T+k}, v{T+k}, v{A+k}")
        for k in range(16):
            self(f"v_exp_f32 v{T+k}, v{T+k}")
        for k in range(16):
            self(f"v_add_f32 v{T+k}, 1.0, v{T+k}")
        for k in range(16):
            self(f"v_rcp_f32 v{T+k}, v{T+k}")
        for k in range(16):
            self(f"v_mul_f32 v{A+k}, v{A+k}, v{T+k}")
        for k in range(8):
            self(f"v_cvt_pk_bf16_f32 v{16+k}, v{A+2*k}, v{A+2*k+1}")
        self(f"""s_lshr_b32 s52, s54, 1
        s_lshl1_add_u32 s52, s81, s52
        s_mul_i32 s53, s52, 112
        s_lshl1_add_u32 s53, s83, s53
        s_lshl_b32 s53, s53, 10
        s_add_u32 s53, s53, {WS_U}
        buffer_store_dwordx4 v[16:19], v{self.VFD}, s[{SRD_WS}:{SRD_WS+3}], s53 offen{self.sc}
        buffer_store_dwordx4 v[20:23], v{self.VFD}, s[{SRD_WS}:{SRD_WS+3}], s53 offen offset:1024{self.sc}""")
        if self.mega:
            self(f"""s_lshr_b32 s52, s54, 1
            s_lshl1_add_u32 s52, s81, s52
            s_lshl_b32 s52, s52, 6
            s_add_u32 s52, s52, s83
            s_lshl_b32 s52, s52, 7
            s_add_u32 s52, s52, {WS_FU}""")
            self.gsignal(52, 1, 2)

    def g23(self, ring_free_val, red_val):
        A = self.ACC
        VG0, VG1, VB2 = 11, 12, 13
        self(f"""s_sub_u32 s54, s{S_WAVE}, 8
        s_and_b32 s52, s{S_WG}, 7
        s_lshr_b32 s82, s{S_WG}, 3
        s_and_b32 s80, s82, 3
        s_lshl2_add_u32 s80, s52, s80
        s_lshr_b32 s81, s82, 2""")
        self.srd(SRD_3, P_W2, 1792 * 4096)
        self.srd(SRD_4, P_WO, 512 * 1024)
        self.srd(SRD_2, P_OUT, 2048 * 1024)
        self.g_setup(4096, True, 0)
        self(f"""s_cmp_ge_u32 s82, 28
        s_cselect_b32 s52, 28, 0
        s_sub_u32 s74, s82, s52
        s_mov_b32 s75, s74
        s_mul_i32 s76, s54, {28*16*4096}
        s_lshl_b32 s52, s80, 7
        s_add_u32 s76, s76, s52
        s_lshr_b32 s52, s54, 1
        s_lshl1_add_u32 s52, s81, s52
        s_xor_b32 s53, s52, 1
        s_mul_i32 s77, s52, {112*1024}
        s_mul_i32 s78, s53, {112*1024}
        s_mul_i32 s53, s54, {28*1024}
        s_add_u32 s53, s53, {WS_U}
        s_add_u32 s77, s77, s53
        s_add_u32 s78, s78, s53""")
        if ring_free_val:
            self.wait(self.VG_POLL, 2, ring_free_val)
        self(f"s_and_b32 s52, s54, 1\ns_lshl1_add_u32 s83, s80, s52")
        t_pre = 0
        if self.mega:
            t_pre = D
            self(f"""s_lshl_b32 s52, s81, 7
            s_mul_i32 s53, s54, 14
            s_add_u32 s52, s52, s53
            s_lshl_b32 s52, s52, 7
            s_add_u32 s52, s52, {WS_FU}
            v_lshrrev_b32 v1, 1, v0
            v_min_u32 v1, 13, v1
            v_and_b32 v2, 1, v0
            v_lshl_add_u32 v1, v2, 6, v1
            v_lshl_add_u32 v1, v1, 7, s52""")
            self("s_setprio 0")
            self.gwait(1, 2, sleep=8, between=lambda: [self.g_issue_T(i, 28, SRD_3, 4096) for i in range(D)], nvm=2 * D)
        self.stamp(5)
        self(f"s_setprio {self.gprio}")
        self.g_pass(28, "g2", SRD_3, 4096, True, True, t_pre=t_pre)
        self.stamp(6)
        self("s_setprio 3")
        self.g_setup(1024, True, 1)
        self(f"""s_and_b32 s74, s82, 7
        s_mov_b32 s75, s74
        s_lshl_b32 s76, s54, 17
        s_lshl_b32 s52, s81, 7
        s_add_u32 s76, s76, s52
        s_lshl_b32 s77, s83, 15
        s_lshl_b32 s53, s54, 13
        s_add_u32 s77, s77, s53
        s_add_u32 s77, s77, {WS_O}
        s_xor_b32 s78, s77, {1 << 15}""")
        for i in range(R):
            self.g_issue_T(i, 8, SRD_4, 1024)
        self(f"v_sub_f32 v{VG0}, 1.0, v{VG0}\nv_sub_f32 v{VG1}, 1.0, v{VG1}\nv_lshlrev_b32 v{VB2}, 16, v{VB2}")
        for q in range(4):
            for k in range(16):
                self(f"v_mul_f32 v{A+16*q+k}, v{A+16*q+k}, v{VG1 if q & 1 else VG0}")
        for k in range(16):
            self(f"v_fmac_f32 v{A+k}, v{VB2}, v{VG0}")
        if self.mega:
            self(f"""s_lshl_b32 s52, s80, 6
            s_lshl3_add_u32 s52, s54, s52
            s_lshl_b32 s52, s52, 7
            s_add_u32 s52, s52, {WS_FO}
            v_bfe_u32 v1, v0, 1, 3
            v_and_b32 v2, 1, v0
            v_lshl_add_u32 v1, v2, 5, v1
            v_lshl_add_u32 v1, v1, 7, s52
            s_setprio 0""")
            self.gwait(1, 2, sleep=4)
            self("s_setprio 3")
        self.stamp(7)
        self.g_pass(8, "op", SRD_4, 1024, True, False, t_pre=R, dist=R)
        self.g_reduce(red_val)
        for k in range(8):
            self(f"v_cvt_pk_bf16_f32 v{16+k}, v{A+2*k}, v{A+2*k+1}")
        self(f"""v_and_b32 v1, 31, v0
        v_lshlrev_b32 v1, 10, v1
        v_lshrrev_b32 v2, 5, v0
        v_lshl_add_u32 v1, v2, 4, v1
        s_lshr_b32 s52, s54, 1
        s_lshl1_add_u32 s52, s81, s52
        s_lshl_b32 s52, s52, 6
        s_lshl_b32 s53, s83, 15
        s_add_u32 s52, s52, s53
        v_permlane32_swap_b32 v16, v18
        v_permlane32_swap_b32 v17, v19
        v_permlane32_swap_b32 v20, v22
        v_permlane32_swap_b32 v21, v23
        s_nop 1
        buffer_store_dwordx4 v[16:19], v1, s[{SRD_2}:{SRD_2+3}], s52 offen
        buffer_store_dwordx4 v[20:23], v1, s[{SRD_2}:{SRD_2+3}], s52 offen offset:32""")
        if self.mega:
            l = self.lab("EP")
            self(f"""s_lshl4_add_u32 s52, s{S_WG}, s54
            s_cmp_lg_u32 s52, 0
            s_cbranch_scc1 {l}
            s_mov_b32 s52, {WS_EPOCH}""")
            self.gsignal(52, 1, 2)
            self(f"{l}:")


def descriptor(label, nv):
    return f""".amdhsa_kernel {label}
  .amdhsa_next_free_vgpr {nv}
  .amdhsa_next_free_sgpr 102
  .amdhsa_accum_offset {nv}
  .amdhsa_group_segment_fixed_size 0
  .amdhsa_kernarg_size 96
  .amdhsa_user_sgpr_count 2
  .amdhsa_user_sgpr_kernarg_segment_ptr 1
  .amdhsa_system_sgpr_workgroup_id_x 1
.end_amdhsa_kernel
"""


HEAD = open("cdna_kernels/" + NAME + ".s.ref").read().split("; Override launch")[0]


def build_multi(extra_empty=0, prof=False, opts={}):
    g = Gen(False, prof)
    g.__dict__.update(opts)
    launches = [("k1_kernel", 768), ("k2_kernel", 768), ("k3_kernel", 256)]
    g.prologue("k1_kernel", 0, "K1_exit")
    g(f"s_cmp_ge_u32 s{S_WAVE}, 8\ns_cbranch_scc1 K1_g\ns_cmp_lt_u32 s{S_WAVE}, 4\ns_cbranch_scc1 K1_c")
    g.qkv_loader()
    g.end()
    g("K1_exit:\ns_endpgm\nK1_c:")
    g.qkv_compute()
    g.end()
    g("K1_g:")
    g.ln_issue()
    g.sync_regs(g.VG_SIG, g.VG_POLL, 8, 4)
    g.ln(0)
    g.end()
    g.kid = 1
    g.prologue("k2_kernel", 0, "K2_exit")
    g.clear_sync(); g.args(); g.get_tag()
    g(f"s_cmp_ge_u32 s{S_WAVE}, 8\ns_cbranch_scc1 K2_g")
    g.attention()
    g("K2_g:")
    g.sync_regs(g.VG_SIG, g.VG_POLL, 8, 4)
    g.g1_map()
    g("s_cmp_ge_u32 s82, 28\ns_cbranch_scc1 K2_exit")
    g.g1_setup()
    g.g1_main(0)
    g.end()
    g("K2_exit:\ns_endpgm")
    g.kid = 2
    g.prologue("k3_kernel", 8, "K3_exit")
    g.clear_sync(); g.args(); g.get_tag()
    g.sync_regs(g.VG_SIG, g.VG_POLL, 8, 4)
    g(f"s_sub_u32 s54, s{S_WAVE}, 8")
    g.gate_loads()
    g.g23(0, 1)
    g.end()
    g("K3_exit:\ns_endpgm")
    kernels = [k for k, _ in launches]
    if extra_empty:
        g(".p2align 8\n.type k0_kernel,@function\nk0_kernel:\ns_endpgm")
        launches += [("k0_kernel", 64)] * extra_empty
        kernels.append("k0_kernel")
    out = HEAD
    for k, b in launches:
        out += f"; @launch kernel={k} grid=(256,1,1) block=({b},1,1) lds={LDS_TOTAL if k != 'k0_kernel' else 0}\n"
    out += '.amdgcn_target "amdgcn-amd-amdhsa--gfx950"\n.text\n'
    out += "\n".join(g.L) + '\n.section .rodata,"a"\n'
    for k in kernels:
        out += ".p2align 6\n" + descriptor(k, 168)
    return out


def build_mega(prof=False, opts={}):
    g = Gen(True, prof)
    g.__dict__.update(opts)
    k = NAME + "_kernel"
    g(f".globl {k}")
    g.prologue(k, 0, "M_exit")
    g(f"s_cmp_ge_u32 s{S_WAVE}, 8\ns_cbranch_scc1 M_g\ns_cmp_lt_u32 s{S_WAVE}, 4\ns_cbranch_scc1 M_c")
    g.qkv_loader()
    g("s_branch M_attn\nM_c:")
    g.qkv_compute()
    g("M_attn:")
    g.attention()
    g("M_g:")
    g.ln_issue()
    if g.tlb:
        g.touch()
    g.sync_regs(g.VG_SIG, g.VG_POLL, 8, 4)
    g.ln(3 if g.tlb else 0)
    g.g1_map()
    g("s_cmp_ge_u32 s82, 28\ns_cbranch_scc1 M_nog1")
    g.g1_setup()
    g.g1_main(2)
    g("s_branch M_g2\nM_nog1:")
    g.g_start()
    g.gate_loads()
    g.signal(g.VG_SIG, 2, 4)
    g("M_g2:")
    g.g23(4, 5)
    g.end()
    g("M_exit:\ns_endpgm\nCODE_END:")
    out = HEAD + f"; @launch grid=(256,1,1) block=(768,1,1) lds={LDS_TOTAL}\n"
    out += '.amdgcn_target "amdgcn-amd-amdhsa--gfx950"\n.text\n'
    out += "\n".join(g.L) + '\n.section .rodata,"a"\n.p2align 6\n' + descriptor(k, 168)
    return out


if __name__ == "__main__":
    mode = sys.argv[1]
    path = sys.argv[2]
    prof = "--prof" in sys.argv
    opts = {a.split("=")[0]: int(a.split("=")[1]) for a in sys.argv[3:] if "=" in a}
    if mode == "multi":
        s = build_multi(opts.pop("empty", 0), prof, opts)
    else:
        s = build_mega(prof, opts)
    open(path, "w").write(s)
```
